```python
import torch

def _softmax(x, axis=-1):
    return torch.softmax(x, dim=axis)

def _gelu(x):
    return torch.nn.functional.gelu(x, approximate='tanh')

def _silu(x):
    return torch.nn.functional.silu(x)

def _sigmoid(x):
    return torch.sigmoid(x)

def _layernorm(x, axis=-1, eps=1e-05):
    m = x.mean(dim=axis, keepdim=True)
    v = x.var(dim=axis, keepdim=True, unbiased=False)
    return (x - m) / torch.sqrt(v + eps)

def _scatter_add(tgt, idx, src, axis=0):
    return tgt.clone().index_add_(axis, idx, src)

def _segment_sum(src, seg, n):
    out = torch.zeros((n,) + src.shape[1:], dtype=src.dtype)
    return out.index_add_(0, seg, src)

def _pad(x, pw):
    flat = tuple((v for pair in reversed(pw) for v in pair))
    return torch.nn.functional.pad(x, flat)
kernel_name = 'adaLN_cond__gqa_block_cached__glu_gated_geglu__prompt'

def setup_inputs():

    _w = lambda a: (lambda t: t.to(torch.bfloat16) if t.is_floating_point() else t)(torch.as_tensor(a))

    def _A_setup():
        B, Sq, D = (1, 2048, 576)
        Hq, Hkv, Sk, Dh = (32, 16, 2048, 128)
        assert Hq % Hkv == 0, (Hq, Hkv)
        return {'x': _w((lambda *s: torch.randn(*s, dtype=torch.bfloat16) * 0.05)(B, Sq, D)), 'k_cache': _w((lambda *s: torch.randn(*s, dtype=torch.bfloat16) * 0.8)(B, Hkv, Sk, Dh)), 'v_cache': _w((lambda *s: torch.randn(*s, dtype=torch.bfloat16) * 3.2)(B, Hkv, Sk, Dh)), 'wq': _w((lambda *s: torch.randn(*s, dtype=torch.bfloat16) * 0.8)(D, Hq * Dh) * D ** (-0.5)), 'wo': _w((lambda *s: torch.randn(*s, dtype=torch.bfloat16) * 3.2)(Hq * Dh, D) * (Hq * Dh) ** (-0.5))}
    _A_in = _A_setup()

    def _B_setup():
        B, S, Dm, Df = (1, 2048, 576, 4608)
        return {'x': _w((lambda *s: torch.randn(*s, dtype=torch.bfloat16) * 0.05)(B, S, Dm)), 'w_gate': _w((lambda *s: torch.randn(*s, dtype=torch.bfloat16) * 3.2)(Dm, Df) * Dm ** (-0.5)), 'w_up': _w((lambda *s: torch.randn(*s, dtype=torch.bfloat16) * 3.2)(Dm, Df) * Dm ** (-0.5)), 'w_down': _w((lambda *s: torch.randn(*s, dtype=torch.bfloat16) * 3.2)(Df, Dm) * Df ** (-0.5))}
    _B_in = _B_setup()
    return {'A_x': _A_in['x'], 'A_k_cache': _A_in['k_cache'], 'A_v_cache': _A_in['v_cache'], 'A_wq': _A_in['wq'], 'A_wo': _A_in['wo'], 'B_x': _B_in['x'], 'B_w_gate': _B_in['w_gate'], 'B_w_up': _B_in['w_up'], 'B_w_down': _B_in['w_down'], 'c': _w((lambda *s: torch.randn(*s, dtype=torch.bfloat16) * 0.4)(1, 576) * 8.0), 'w_mod': _w((lambda *s: torch.randn(*s, dtype=torch.bfloat16) * 0.4)(576, 6 * 576) * 576 ** (-0.5) * 8.0)}

def reference(A_x, A_k_cache, A_v_cache, A_wq, A_wo, B_x, B_w_gate, B_w_up, B_w_down, c, w_mod):

    def _A_ref(x, k_cache, v_cache, wq, wo):
        B, Sq, D = x.shape
        Hq, Dh = (32, 128)
        Hkv = k_cache.shape[1]
        rep = Hq // Hkv
        q = (lambda x, *d: x.permute(*d))((x @ wq).reshape(B, Sq, Hq, Dh), 0, 2, 1, 3)
        k = (lambda x, n, axis: torch.repeat_interleave(x, n, dim=axis))(k_cache, rep, axis=1)
        v = (lambda x, n, axis: torch.repeat_interleave(x, n, dim=axis))(v_cache, rep, axis=1)
        scores = torch.einsum('bhqd,bhkd->bhqk', q, k) * Dh ** (-0.5)
        p = _softmax(scores, axis=-1)
        o = torch.einsum('bhqk,bhkd->bhqd', p, v)
        return (lambda x, *d: x.permute(*d))(o, 0, 2, 1, 3).reshape(B, Sq, Hq * Dh) @ wo

    def _B_ref(x, w_gate, w_up, w_down):
        g = torch.einsum('bsd,df->bsf', x, w_gate)
        u = torch.einsum('bsd,df->bsf', x, w_up)
        h = _gelu(g) * u
        return torch.einsum('bsf,fd->bsd', h, w_down)
    x = A_x
    mod = (_silu(c) @ w_mod).reshape(c.shape[0], 6, 1, -1)
    sa, ca, ga, sb, cb, gb = (mod[:, 0].clone(), mod[:, 1].clone(), mod[:, 2].clone(), mod[:, 3].clone(), mod[:, 4].clone(), mod[:, 5].clone())
    h = _layernorm(x, axis=-1) * (1 + ca) + sa
    x = x + ga * _A_ref(h, A_k_cache, A_v_cache, A_wq, A_wo)
    h = _layernorm(x, axis=-1) * (1 + cb) + sb
    x = x + gb * _B_ref(h, B_w_gate, B_w_up, B_w_down)
    return x
```

```python
import re
TRANS = ('v_exp_f32','v_log_f32','v_rcp_f32','v_rsq_f32','v_sqrt_f32','v_sin_f32','v_cos_f32')
def regs(tok):
    tok = tok.strip().lstrip('-').strip('|')
    m = re.fullmatch(r'([vas])\[(\d+):(\d+)\]', tok)
    if m: return [f"{m.group(1)}{i}" for i in range(int(m.group(2)), int(m.group(3))+1)]
    if re.fullmatch(r'[vas]\d+', tok): return [tok]
    if tok == 'vcc': return ['vcc']
    if tok == 'exec': return ['exec']
    if tok == 'm0': return ['m0']
    return []
class I:
    __slots__ = ('t','op','k','r','w','tag','srcC','ab','wide','dpp')
    def __init__(s, t, tag=None):
        s.t = t; s.tag = tag; s.srcC = []; s.ab = []; s.wide = False
        t0 = t.split(';')[0].strip()
        s.dpp = ('row_' in t0) or ('quad_perm' in t0)
        if t0.endswith(':') or t0.startswith('.'):
            s.op = t0; s.k = 'label' if t0.endswith(':') else 'dir'; s.r = []; s.w = []; return
        t0 = re.sub(r'\w+:\[[^\]]*\]', '', t0).strip()
        p = t0.split(None, 1); op = p[0]; s.op = op
        ops = [x.strip() for x in p[1].split(',')] if len(p) > 1 else []
        if ops:
            last = ops[-1].split()
            mods = last[1:]; ops[-1] = last[0] if last else ''
        else: mods = []
        R = lambda lst: [x for o in lst for x in regs(o)]
        if op.startswith('v_mfma'):
            s.k = 'mfma'; s.w = R(ops[:1]); s.ab = R(ops[1:3]); s.srcC = R(ops[3:4]); s.r = s.ab + s.srcC
        elif op.startswith('v_smfmac'):
            s.k = 'mfma'; s.w = R(ops[:1]); s.ab = R(ops[1:4]); s.srcC = R(ops[:1]); s.r = s.ab + s.srcC
        elif op.startswith('ds_read') or op.startswith('ds_bpermute') or op.startswith('ds_swizzle'):
            s.k = 'ds'; s.w = R(ops[:1]); s.r = R(ops[1:])
        elif op.startswith('ds_'):
            s.k = 'ds'; s.w = []; s.r = R(ops)
        elif op.startswith('buffer_load') or op.startswith('global_load'):
            s.k = 'vm'
            if 'lds' in mods: s.w = []; s.r = R(ops) + ['m0']
            else: s.w = R(ops[:1]); s.r = R(ops[1:])
        elif op.startswith('buffer_store') or op.startswith('global_store') or op.startswith('buffer_atomic'):
            s.k = 'vm'; s.w = []; s.r = R(ops); s.wide = op.endswith('x4') or op.endswith('x3')
            if s.wide: s.ab = R(ops[:1])
        elif op.startswith('buffer_'):
            s.k = 'vm'; s.w = []; s.r = []
        elif op.startswith('s_load') or op.startswith('s_memtime') or op.startswith('s_memrealtime'):
            s.k = 'smem'; s.w = R(ops[:1]); s.r = R(ops[1:])
        elif op == 's_waitcnt': s.k = 'wait'; s.w = []; s.r = []
        elif op == 'WAITVM': s.k = 'waitvm'; s.w = []; s.r = []
        elif op == 's_barrier': s.k = 'bar'; s.w = []; s.r = []
        elif op == 's_nop': s.k = 'nop'; s.w = []; s.r = []
        elif op.startswith('s_cbranch') or op in ('s_branch', 's_endpgm'):
            s.k = 'br'; s.w = []; s.r = []
        elif op.startswith('s_cmp') or op in ('s_setprio', 's_sleep'):
            s.k = 'salu'; s.w = []; s.r = R(ops)
        elif op.startswith('s_'):
            s.k = 'salu'; s.w = R(ops[:1]); s.r = R(ops[1:])
            if 'saveexec' in op: s.w = s.w + ['exec']
        elif op.startswith('v_'):
            s.k = 'valu'
            if 'permlane' in op and 'swap' in op: s.w = R(ops[:2]); s.r = R(ops[:2])
            else:
                s.w = R(ops[:1]); s.r = R(ops[1:])
                if op.startswith('v_fmac') or op.startswith('v_mac') or op.startswith('v_dot2c') or s.dpp: s.r = s.r + s.w
                if op.startswith('v_cndmask') and len(ops) == 3: s.r = s.r + ['vcc']
        else: raise Exception('unknown op ' + t)
    def ws(s):
        if s.k == 'nop': return int(s.t.split()[1], 0) + 1
        if s.k in ('label', 'dir', 'waitvm'): return 0
        return 1

def need(p, c):
    n = 0
    pw = set(p.w)
    if p.k == 'valu':
        vw = {x for x in pw if x[0] in 'va' and x != 'vcc'}
        sw = pw - vw
        if c.k == 'mfma' and vw & set(c.r): n = max(n, 2)
        if c.k == 'valu':
            if p.op in TRANS and vw & set(c.r): n = max(n, 1)
            if ('permlane' in c.op or c.dpp) and vw & set(c.r): n = max(n, 2)
            if c.op.startswith('v_read') and vw & set(c.r): n = max(n, 1)
            if sw & set(c.r): n = max(n, 2)
            if 'mix' in p.op and p.op != 'v_fma_mix_f32' and vw & set(c.r + c.w): n = max(n, 1)
        if c.k == 'vm' and sw & set(c.r): n = max(n, 5)
        if p.op.startswith('v_dot') and c.op != p.op and vw & set(c.r + c.w): n = max(n, 3)
    if p.k == 'mfma':
        big = 12 if p.op.startswith('v_smfmac') else 8
        if c.k == 'mfma':
            if pw & set(c.ab): n = max(n, big)
            if pw & set(c.srcC) and (c.srcC != p.w or p.op != c.op): n = max(n, big - 2)
            if pw & set(c.w) and not (pw & set(c.srcC)): n = max(n, 0)
        elif c.k in ('valu', 'ds', 'vm'):
            if pw & set(c.r + c.w): n = max(n, big)
            if c.k == 'valu' and set(p.srcC) & set(c.w): n = max(n, 3 if big == 8 else 7)
    if p.k == 'salu' and 'm0' in pw and c.k == 'vm' and 'm0' in c.r: n = max(n, 1)
    if p.k == 'vm' and p.wide and set(p.ab) & set(c.w): n = max(n, 2 if c.k in ('valu', 'mfma') else 1)
    return n

class Prog:
    def __init__(s, name):
        s.name = name; s.ins = []; s.stats = {}
    def __call__(s, text, tag=None):
        for l in text.split('\n'):
            l = l.strip()
            if l and not l.startswith(';'): s.ins.append(I(l, tag))
    def gaps(s, G):
        for g in G:
            if g.get('m'): s(g['m'])
            for key in ('s', 'd', 'v'):
                for x in g.get(key, []):
                    if isinstance(x, tuple): s(x[0], x[1])
                    else: s(x)
    def autowait(s):
        out = []; cnt = {'ds': [], 'vm': []}
        lastm = -1
        def setwait(pos, kind, n):
            name = 'lgkmcnt' if kind == 'ds' else 'vmcnt'
            if pos < len(out) and out[pos].k == 'wait' and out[pos].tag == 'auto':
                d = dict(re.findall(r'(\w+)\((\d+)\)', out[pos].t))
                d[name] = min(int(d.get(name, 99)), n)
                out[pos] = I('s_waitcnt ' + ' '.join(f"{k}({v})" for k, v in sorted(d.items(), reverse=True)), 'auto')
            else:
                out.insert(pos, I(f"s_waitcnt {name}({n})", 'auto'))
                for kk in cnt:
                    for e in cnt[kk]:
                        if e[0] >= pos: e[0] += 1
        for c in s.ins:
            if c.k in ('label', 'br'):
                for kk in cnt:
                    bad = [e[1].t for e in cnt[kk] if e[1].w]
                    assert not bad, f"{s.name}: pending reg loads at {c.t}: {bad[:3]}"
                lastm = -1
                if c.k == 'label' and c.tag == 'reset': cnt = {'ds': [], 'vm': []}
            if c.k == 'waitvm':
                tg = c.t.split()[1]
                idx = [i for i, e in enumerate(cnt['vm']) if e[1].tag == tg]
                if idx:
                    n = min(63, len(cnt['vm']) - 1 - idx[-1])
                    out.append(I(f"s_waitcnt vmcnt({n})"))
                    cnt['vm'] = cnt['vm'][len(cnt['vm']) - n:] if n else []
                continue
            if c.k == 'wait':
                d = dict(re.findall(r'(\w+)\((\d+)\)', c.t))
                for kk, nm in (('ds', 'lgkmcnt'), ('vm', 'vmcnt')):
                    if nm in d:
                        n = int(d[nm]); cnt[kk] = cnt[kk][len(cnt[kk]) - n:] if n and len(cnt[kk]) > n else (cnt[kk] if n else [])
            for kk, mx in (('ds', 15), ('vm', 63)):
                touch = set(c.r) | (set(c.w) if c.k != kk else set())
                idx = [i for i, e in enumerate(cnt[kk]) if touch & set(e[1].w)]
                if idx:
                    pi = idx[-1]; ppos = cnt[kk][pi][0]
                    pos = lastm + 1 if (lastm >= 0 and ppos <= lastm) else len(out)
                    if pos == len(out) and lastm >= 0 and pos != lastm + 1: s.stats['latewait'] = s.stats.get('latewait', 0) + 1
                    before = [i for i, e in enumerate(cnt[kk]) if e[0] < pos]
                    n = min(mx, before[-1] - pi)
                    setwait(pos, kk, n)
                    cnt[kk] = cnt[kk][before[-1] + 1 - n:]
            out.append(c)
            if c.k in ('ds', 'vm'): cnt[c.k].append([len(out) - 1, c])
            if c.k == 'smem': pass
            if c.k == 'mfma': lastm = len(out) - 1
        s.ins = out
    def pad(s, seq=None, fix=True):
        out = []; nn = 0
        for c in (seq if seq is not None else s.ins):
            if c.ws() and c.k not in ('nop', 'wait', 'bar', 'br'):
                d = 0; req = 0
                for p in reversed(out):
                    n = need(p, c)
                    if n - d > req: req = n - d
                    d += p.ws()
                    if d >= 12: break
                if req > 0:
                    assert fix, f"{s.name}: hazard across back-edge before {c.t}"
                    out.append(I(f"s_nop {req-1}")); nn += 1
            out.append(c)
        if fix: s.ins = out; s.stats['nops'] = nn
    def checkedges(s):
        lab = {c.op[:-1]: i for i, c in enumerate(s.ins) if c.k == 'label'}
        for i, c in enumerate(s.ins):
            if c.k == 'br' and c.op != 's_endpgm':
                j = lab[c.t.split()[1]]
                s.pad(s.ins[max(0, i-14):i+1] + s.ins[j:j+14], fix=False)
    def finish(s):
        s.autowait(); s.pad(); s.checkedges()
        s.stats['n'] = len(s.ins)
        return '\n'.join(c.t for c in s.ins) + '\n'

def header(name):
    return f".text\n.globl {name}\n.p2align 8\n.type {name},@function\n{name}:\n"
def desc(name, vgpr, accum, sgpr=102):
    return f""".p2align 6
.amdhsa_kernel {name}
  .amdhsa_next_free_vgpr {vgpr}
  .amdhsa_next_free_sgpr {sgpr}
  .amdhsa_accum_offset {accum}
  .amdhsa_group_segment_fixed_size 0
  .amdhsa_kernarg_size 112
  .amdhsa_user_sgpr_count 2
  .amdhsa_user_sgpr_kernarg_segment_ptr 1
  .amdhsa_system_sgpr_workgroup_id_x 1
  .amdhsa_float_denorm_mode_32 3
.end_amdhsa_kernel
"""
def R(p, b, n=4): return f"{p}[{b}:{b+n-1}]" if n > 1 else f"{p}{b}"
def srd(P, d, base, size, off=None):
    if off is None:
        P(f"s_mov_b32 s{d}, s{base}\ns_mov_b32 s{d+1}, s{base+1}")
    else:
        P(f"s_add_u32 s{d}, s{base}, {off}\ns_addc_u32 s{d+1}, s{base+1}, 0")
    P(f"s_mov_b32 s{d+2}, {size}\ns_mov_b32 s{d+3}, 0x20000")

def mf(d, a, b, c=None):
    return f"v_mfma_f32_16x16x32_bf16 {d}, {a}, {b}, {d if c is None else c}"
class Sched:
    def __init__(s): s.G = []
    def m(s, text):
        s.G.append(dict(m=text, s=[], d=[], v=[], free=2)); return len(s.G) - 1
    def put(s, g, key, x, cost=1):
        s.G[g][key].append(x); s.G[g]['free'] -= cost
    def sc(s, g, x): s.G[g]['s'].append(x)
    def fill(s, items, start, end=None, step=1):
        g = start; end = len(s.G) if end is None else end
        for n, it in enumerate(items):
            key, x, cost, sca = it[:4]
            if len(it) > 4: g = max(g, it[4])
            while g < end and (s.G[g]['free'] < cost or (sca and len(s.G[g]['s']) + len(sca) > 2)): g += 1
            if g >= end: return g, items[n:]
            s.put(g, key, x, cost)
            for y in sca: s.sc(g, y)
            if cost == 2: g += step
        return g, []
def V(x, e=None): return ('v', x, 2 if x.split()[0] in TRANS else 1, []) + ((e,) if e is not None else ())
def emit_left(P, left):
    for it in left:
        for y in it[3]: P(y)
        x = it[1]
        if isinstance(x, tuple): P(x[0], x[1])
        else: P(x)
```

```python
from fw import *
from small import MODP, MODF, XH, PART, NB
SLOT = 36864
MODL = 4*SLOT; FLAG = MODL + 4608; LDS1 = FLAG + 64
vL, vDQ, vDO, vDKV, vKA, vKB, vVA, vVB, vST, vIDX, vBP = 1, 2, 3, 4, 5, 6, 7, 8, 9, 10, 11
vW = 12; MN = 16; TMP = 32; ACC = 16; H = 48; S = 48; PB = (64, 128); Q = 192
O = 0; KF = 128; VF = 160; L = 200; ONES = 216
sW, sKV, sQT = 3, 4, 5
WQ, KS, VS, WO, WS = 8, 12, 16, 20, 24
sM, sMK, sMV, sKo, sVo, sT, sCnt, sFB, sSt0, sSt1, sK0 = 40, 41, 42, 43, 44, 45, 46, 47, 48, 49, 50
SCALE = 0x3e0293ee

def dma(kind, i, slot, base, tag):
    if kind == 'q':  sc = [f"s_add_u32 m0, s{sM}, {slot*SLOT + i*4096}", f"s_mov_b32 s{sT}, {base + i*32*8192}"]; v, r = vDQ, WQ
    if kind == 'o':  sc = [f"s_add_u32 m0, s{sM}, {slot*SLOT + i*4096}", f"s_mov_b32 s{sT}, {base + i*32*1152}"]; v, r = vDO, WO
    if kind == 'k':  sc = [f"s_add_u32 m0, s{sMK}, {slot*SLOT + i*4160}", f"s_add_u32 s{sT}, s{sKo}, {i*4096}"]; v, r = vDKV, KS
    if kind == 'v':  sc = [f"s_add_u32 m0, s{sMV}, {slot*SLOT + i*4224}", f"s_add_u32 s{sT}, s{sVo}, {i*4096}"]; v, r = vDKV, VS
    return ('d', (f"buffer_load_dwordx4 v{v}, {R('s',r)}, s{sT} offen lds", tag), 2, sc)
def qunit(u): return [dma('q', i, u % 4, (u >> 1)*128 + (u & 1)*288*8192, f"q{u}") for i in range(9)]
OSL = [3, 1, 2, 0]
def ounit(u): return [dma('o', i, OSL[u % 4], u*128, f"o{u}") for i in range(8)]
def kvt(kind, slot, tag): return [dma(kind, i, slot, 0, tag) for i in range(8)]
def adv(s): return [f"s_add_u32 s{s}, s{s}, 32768", f"s_and_b32 s{s}, s{s}, 0x7ffff"]
def kread(kb, slot):
    return [f"ds_read_b128 {R('a', KF + 16*(kb & 1) + 4*ds)}, v{vKA if slot < 2 else vKB} offset:{(slot & 1)*SLOT + 16640*(kb >> 2) + 256*(kb & 3) + 64*ds}" for ds in range(4)]
def vread(db, slot):
    return [f"ds_read_b64_tr_b16 {R('a', VF + 16*(db & 1) + 2*kb, 2)}, v{vVA if slot < 2 else vVB} offset:{(slot & 1)*SLOT + 16896*(kb >> 2) + 256*(kb & 3) + 32*db}" for kb in range(8)]
def wread(buf, s, ks):
    return [f"ds_read_b64_tr_b16 {R('a', buf + 4*ks + 2*h, 2)}, v{vW+s} offset:{(4*ks + 2*h)*1024}" for h in range(2)]
def qk(kb, c, ds, d, c0):
    return mf(R('v', d), R('a', KF + 16*(kb & 1) + 4*ds), R('v', Q + 16*c + 4*ds), c0 if ds == 0 else None)
def pv(db, c, j, pb):
    return mf(R('a', O + 16*db + 4*c), R('a', VF + 16*(db & 1) + 4*j), R('v', pb + 16*c + 4*j))
def smf(c, h, pb): return f"v_smfmac_f32_16x16x64_bf16 {R('a', L + 4*c)}, {R('a', ONES)}, {R('v', pb + 16*c + 8*h, 8)}, v{vIDX}"
def exps(c): return [f"v_exp_f32 v{S+4*c+i}, v{S+4*c+i}" for i in range(4)]
def cvts(kb, c, pb): return [f"v_cvt_pk_bf16_f32 v{pb+16*c+2*kb+i}, v{S+4*c+2*i}, v{S+4*c+2*i+1}" for i in range(2)]
def xmax(P, t, u):
    P(f"v_mov_b32 v{u}, v{t}\nv_permlane16_swap_b32 v{t}, v{u}\nv_max_f32 v{t}, v{t}, v{u}\nv_mov_b32 v{u}, v{t}\nv_permlane32_swap_b32 v{t}, v{u}\nv_max_f32 v{t}, v{t}, v{u}")

def stage(P, par, kslot, vslot, nk, nv, dmas, wait, post):
    Z = Sched(); pin, pout = PB[par], PB[par ^ 1]
    for g in range(8):
        g0 = len(Z.G)
        for c in range(4):
            w0 = len(Z.G)
            for ds in range(4): Z.m(qk(g, c, ds, S + 4*c, R('v', MN + 4*c)))
            for j in range(4): Z.m(pv(g, c, j, pin))
            pc = (c - 1) & 3; pkb = g if c else g - 1
            e = exps(pc); cv = cvts(pkb & 7, pc, pout if pkb >= 0 else pin)
            for i in range(4): Z.put(w0 + 2*i, 'v', e[i], 2)
            Z.put(w0 + 3, 'v', cv[0]); Z.put(w0 + 7, 'v', cv[1])
        Z.m(smf(g >> 1, g & 1, pin))
        if g < 7: rd = kread(g + 1, kslot) + vread(g + 1, vslot)
        else:
            rd = (kread(0, nk) if nk is not None else []) + vread(0, nv)
            Z.sc(g0, wait); Z.sc(g0, "s_barrier")
        pos = [g0 + 8*w + o for w in range(3) for o in (1, 1, 3, 7)]
        for x, p in zip(rd, pos): Z.put(p, 'd', x)
        Z.sc(len(Z.G) - 1, "s_waitcnt lgkmcnt(0)")
    g, left = Z.fill(dmas, 0, 33*6); assert not left
    for i, x in enumerate(post): Z.sc(33*6 + 2 + i, x)
    P.gaps(Z.G)

def k1():
    P = Prog('k1')
    P(f"""s_cmp_ge_u32 s2, 256
    s_cbranch_scc1 K1_end
    s_load_dwordx4 s[28:31], s[0:1], 8
    s_load_dwordx4 s[32:35], s[0:1], 24
    s_load_dwordx2 s[36:37], s[0:1], 104
    v_lshrrev_b32 v16, 6, v0
    v_and_b32 v{vL}, 63, v0
    v_readfirstlane_b32 s{sW}, v16
    s_and_b32 s{sKV}, s2, 7
    s_lshl_b32 s{sKV}, s{sKV}, 1
    s_bfe_u32 s6, s2, 0x10003
    s_add_u32 s{sKV}, s{sKV}, s6
    s_lshr_b32 s{sQT}, s2, 4
    s_lshl_b32 s{sM}, s{sW}, 10
    s_mul_i32 s{sMK}, s{sW}, 1040
    s_mul_i32 s{sMV}, s{sW}, 1056
    s_lshl_b32 s{sK0}, s{sQT}, 15
    s_mov_b32 s{sKo}, s{sK0}
    s_mov_b32 s{sVo}, s{sK0}
    s_mov_b32 s{sFB}, 0
    v_lshlrev_b32 v{vDKV}, 4, v0
    v_lshlrev_b32 v17, 4, v{vL}""")
    P(f"""v_bfe_u32 v18, v{vL}, 1, 2
    v_lshrrev_b32 v19, 4, v{vL}
    v_xor_b32 v18, v18, v19
    v_and_b32 v20, 1, v{vL}
    v_lshlrev_b32 v20, 4, v20
    v_lshl_add_u32 v18, v18, 5, v20
    v_lshrrev_b32 v20, 3, v0
    v_lshl_add_u32 v{vDQ}, v20, 13, v18
    v_mul_u32_u24 v20, 1152, v20
    v_add_u32 v{vDO}, v20, v18
    s_lshl_b32 s6, s{sKV}, 9
    s_lshl_b32 s7, s{sKV}, 19
    s_mul_i32 s38, s{sKV}, 294912
    s_waitcnt lgkmcnt(0)""")
    srd(P, WS, 36, 0x10000000)
    srd(P, WQ, 32, 575*8192 + 512, 's6'); srd(P, KS, 28, 524288, 's7'); srd(P, VS, 30, 524288, 's7'); srd(P, WO, 34, 294912, 's38')
    for vec in range(2):
        for kq in range(4):
            P(f"s_mov_b32 s{sT}, {MODP + kq*13824 + vec*2304}\nbuffer_load_dwordx4 {R('v', Q + 16*vec + 4*kq)}, v{vDKV}, {R('s',WS)}, s{sT} offen")
    P(f"s_and_b32 s39, s2, 3\ns_mul_i32 s39, s39, 2304")
    for kq in range(4):
        P(f"s_add_u32 s{sT}, s39, {MODP + kq*13824 + 2*2304}\nbuffer_load_dwordx4 {R('v', Q + 32 + 4*kq)}, v{vDKV}, {R('s',WS)}, s{sT} offen")
    P(f"s_lshl_b32 s6, s{sQT}, 3\ns_lshl_b32 s7, s{sW}, 1\ns_add_u32 s6, s6, s7\ns_mul_i32 s7, s6, 18432")
    def xload(ks, cb):
        P(f"s_add_u32 s{sT}, s7, {XH + cb*18432 + ks*1024}\nbuffer_load_dwordx4 {R('v', H + 72*cb + 4*ks)}, v17, {R('s',WS)}, s{sT} offen")
    for ks in range(9):
        for cb in range(2): xload(ks, cb)
    emit_left(P, qunit(0))
    for ks in range(9, 18):
        for cb in range(2): xload(ks, cb)
    P(f"""s_mul_i32 s38, s{sKV}, {NB}
    s_add_u32 s{sSt0}, s38, s7
    s_add_u32 s{sSt0}, s{sSt0}, {PART}
    s_add_u32 s{sSt1}, s{sSt0}, 18432""")
    P(f"""v_and_b32 v20, 15, v{vL}
    v_lshlrev_b32 v{vBP}, 2, v20
    v_lshrrev_b32 v21, 3, v20
    v_mul_u32_u24 v21, 9216, v21
    v_and_b32 v22, 7, v{vL}
    v_lshl_add_u32 v22, v19, 3, v22
    v_lshl_add_u32 v{vST}, v22, 4, v21""")
    def pi(d, x):
        P(f"""v_lshrrev_b32 v23, 2, v{x}
        v_lshrrev_b32 v24, 3, v{x}
        v_xor_b32 v23, v23, v24
        v_and_b32 v23, 1, v23
        v_and_b32 v24, 3, v{x}
        v_lshl_add_u32 v23, v24, 1, v23
        v_and_b32 v24, 8, v{x}
        v_add_u32 v{d}, v23, v24""")
    pi(25, 20)
    P(f"""v_mul_u32_u24 v25, 1040, v25
    v_and_b32 v23, 1, v19
    v_lshrrev_b32 v24, 1, v19
    v_lshl_add_u32 v23, v23, 1, v24
    v_lshl_add_u32 v{vKA}, v23, 4, v25
    v_add_u32 v{vKB}, {2*SLOT}, v{vKA}
    v_lshrrev_b32 v26, 2, v{vL}""")
    pi(25, 26)
    P(f"""v_mul_u32_u24 v25, 1056, v25
    v_and_b32 v27, 3, v{vL}
    v_lshl_add_u32 v{vVA}, v27, 3, v25
    v_add_u32 v{vVB}, {2*SLOT}, v{vVA}""")
    P(f"""v_lshlrev_b32 v25, 7, v26
    v_lshl_add_u32 v25, v27, 3, v25
    v_bfe_u32 v24, v{vL}, 3, 2""")
    for s in range(4): P(f"v_xor_b32 v23, {s}, v24\nv_lshl_add_u32 v{vW+s}, v23, 5, v25")
    P(f"""v_and_b32 v23, 1, v{vL}
    v_mov_b32 v24, 0x44444444
    v_mov_b32 v25, 0xeeeeeeee
    v_cmp_eq_u32 vcc, 1, v23
    v_cndmask_b32 v{vIDX}, v24, v25, vcc
    v_mov_b32 v24, 0
    v_mov_b32 v25, 0x3f803f80
    v_cmp_gt_u32 vcc, 2, v20
    v_cndmask_b32 v23, v24, v25, vcc""")
    for i in range(4): P(f"v_accvgpr_write_b32 a{ONES+i}, v23")
    def zero():
        for i in list(range(O, O+128)) + list(range(L, L+16)): P(f"v_accvgpr_write_b32 a{i}, 0")
    zero()
    def fin(b, one):
        for i in range(4):
            P(f"v_add_f32 v{b+i}, v{b+i}, v{b+4+i}\nv_add_f32 v{b+8+i}, v{b+8+i}, v{b+12+i}\nv_add_f32 v{b+i}, v{b+i}, v{b+8+i}")
        def rnd():
            for i in (0, 2):
                P(f"v_cvt_pk_bf16_f32 v{b+i+1}, v{b+i}, v{b+i+1}\nv_lshlrev_b32 v{b+i}, 16, v{b+i+1}\nv_and_b32 v{b+i+1}, 0xffff0000, v{b+i+1}")
        rnd()
        if one is not None:
            for i in range(4): P(f"v_add_f32 v{b+i}, {one}, v{b+i}")
            rnd()
    fin(Q, None); fin(Q + 16, '1.0')
    for i in list(range(4)) + list(range(16, 20)): P(f"v_mul_f32 v{Q+i}, {hex(SCALE)}, v{Q+i}")
    P(f"s_cmp_eq_u32 s2, 2\ns_cselect_b32 s38, 1.0, 0")
    fin(Q + 32, 's38')
    from k3 import KAPPA, IK2
    P(f"""s_mov_b32 s38, {hex(KAPPA)}
    s_cmp_eq_u32 s2, 0
    s_cselect_b32 s38, 1.0, s38
    s_cmp_eq_u32 s2, 3
    s_cselect_b32 s38, {hex(IK2)}, s38""")
    for i in range(4): P(f"v_mul_f32 v{Q+32+i}, s38, v{Q+32+i}")
    P(f"""v_cmp_gt_u32 vcc, 144, v0
    v_add_u32 v23, {MODL}, v{vDKV}
    s_and_saveexec_b64 s[52:53], vcc
    ds_write_b128 v23, {R('v', Q+16)}
    ds_write_b128 v23, {R('v', Q)} offset:2304
    s_add_u32 s39, s39, {MODF + 2*2304}
    s_cmp_lt_u32 s2, 4
    s_cselect_b32 s39, s39, 0x10000000
    buffer_store_dwordx4 {R('v', Q+32)}, v{vDKV}, {R('s',WS)}, s39 offen
    s_mov_b64 exec, s[52:53]""")
    emit_left(P, qunit(1))
    P(f"""s_waitcnt lgkmcnt(0)
    s_barrier
    v_lshlrev_b32 v23, 4, v19
    v_add_u32 v23, {MODL}, v23""")
    def mread(ks):
        b = Q + 16*(ks % 3)
        for i, off in enumerate((0, 64, 2304, 2368)): P(f"ds_read_b128 {R('v', b+4*i)}, v23 offset:{off + 128*ks}")
    mread(0); mread(1)
    for ks in range(18):
        if ks + 2 < 18: mread(ks + 2)
        if ks == 9: emit_left(P, qunit(2))
        b = Q + 16*(ks % 3)
        for cb in range(2):
            for i in range(4):
                x = H + 72*cb + 4*ks + i; t = TMP + 2*i + 8*cb
                P(f"v_fma_mix_f32 v{t}, v{x}, v{b+2*i}, v{b+8+2*i} op_sel_hi:[1,0,0]")
                P(f"v_fma_mix_f32 v{t+1}, v{x}, v{b+2*i+1}, v{b+8+2*i+1} op_sel:[1,0,0] op_sel_hi:[1,0,0]")
            for i in range(4):
                x = H + 72*cb + 4*ks + i; t = TMP + 2*i + 8*cb
                P(f"v_cvt_pk_bf16_f32 v{x}, v{t}, v{t+1}")
    QB = (128, 164)
    P("WAITVM q0\ns_barrier")
    for ks in range(9):
        for x in wread(QB[0], 0, ks): P(x)
    Z = Sched(); blk = {}
    for u in range(8):
        for s in range(4):
            b = 4*u + s; g0 = len(Z.G); blk[b] = g0
            for cb in range(2):
                for ks in range(9):
                    Z.m(mf(R('v', ACC + 8*s + 4*cb), R('a', QB[b & 1] + 4*ks), R('v', H + 72*cb + 4*(ks + 9*(u & 1))), '0' if (u & 1) == 0 and ks == 0 else None))
            if s == 3:
                Z.sc(g0, f"WAITVM {'q%d' % (u+1) if u < 7 else 'k0'}"); Z.sc(g0, "s_barrier")
            if b < 31:
                for ks in range(9):
                    for x in wread(QB[(b+1) & 1], (s+1) & 3, ks): Z.put(g0 + 2*ks, 'd', x)
            else:
                rd = kread(0, 0) + kread(1, 0)
                for i, x in enumerate(rd): Z.put(g0 + 2*(i//2), 'd', x)
            if u < 7: Z.put(g0 + 1, 'v', f"v_add_u32 v{vW+s}, {hex((SLOT if u % 4 < 3 else -3*SLOT) & 0xffffffff)}, v{vW+s}")
    def qpost(u, s):
        gq = u >> 1; it = []
        for cb in range(2):
            q = Q + 16*((gq >> 1)*2 + cb) + 4*(2*(gq & 1) + (s >> 1)); a = ACC + 8*s + 4*cb
            it += [V(f"v_cvt_pk_bf16_f32 v{q + 2*(s & 1) + i}, v{a+2*i}, v{a+2*i+1}") for i in range(2)]
        sw = []
        if s & 1:
            for cb in range(2):
                q = Q + 16*((gq >> 1)*2 + cb) + 4*(2*(gq & 1) + (s >> 1))
                sw += [V(f"v_permlane16_swap_b32 v{q+i}, v{q+2+i}") for i in range(2)]
        return it, sw
    for u in range(1, 8, 2):
        for s in range(4):
            b = 4*u + s
            if b < 31:
                it, sw = qpost(u, s)
                g, left = Z.fill(it, blk[b+1] + 3, blk[b+1] + 18); assert not left
                g, left = Z.fill(sw, g + 1, blk[b+1] + 18); assert not left
    for u in range(8):
        d = qunit(u + 3) if u < 5 else (kvt('k', 0, 'k0') if u == 5 else kvt('k', 1, 'k1') if u == 6 else kvt('v', 2, 'v0'))
        g, left = Z.fill(d, blk[4*u + 3] + 1, blk.get(4*u + 7, len(Z.G)), step=3 if u < 7 else 1); assert not left, u
        if u in (5, 6):
            for x in adv(sKo): Z.sc(g, x)
    P.gaps(Z.G)
    for x in adv(sVo): P(x)
    it, sw = qpost(7, 3); emit_left(P, it + sw)
    T = PB[1]
    for kb in range(2):
        for c in range(4):
            for ds in range(4): P(qk(kb, c, ds, T + 16*kb + 4*c, '0'))
    for c in range(4):
        a = T + 4*c; t = TMP + c
        P(f"v_max3_f32 v{t}, v{a}, v{a+1}, v{a+2}\nv_max3_f32 v{t}, v{t}, v{a+3}, v{a+16}\nv_max3_f32 v{t}, v{t}, v{a+17}, v{a+18}\nv_max_f32 v{t}, v{t}, v{a+19}")
    for c in range(4): xmax(P, TMP + c, TMP + 4 + c)
    for c in range(4):
        for i in range(4): P(f"v_sub_f32 v{MN+4*c+i}, 0xc1c00000, v{TMP+c}")
    P("s_nop 1\nK1_stageP:")
    Z = Sched(); wins = []
    for g in range(8):
        g0 = len(Z.G)
        for c in range(4):
            w0 = len(Z.G); n = 4*g + c
            for ds in range(4): Z.m(qk(g, c, ds, S + 4*c, R('v', MN + 4*c)))
            if n >= 2:
                pc = (n - 2) & 3
                for i, e in enumerate(exps(pc)): Z.put(w0 + i, 'v', e, 2)
            if n >= 3:
                for i, x in enumerate(cvts((n-3) >> 2, (n-3) & 3, PB[0])): Z.G[w0 + i]['v'].insert(0, x)
        if g == 7:
            rd = kread(0, 1) + vread(0, 2); Z.sc(g0, "s_waitcnt vmcnt(0)"); Z.sc(g0, "s_barrier")
        else: rd = kread(g + 1, 0) if g else []
        for i, x in enumerate(rd): Z.put(g0 + i, 'd', x)
        if g < 7: Z.sc(len(Z.G) - 1, "s_waitcnt lgkmcnt(0)")
    P.gaps(Z.G)
    for x in cvts(7, 1, PB[0]) + exps(2) + ["s_waitcnt lgkmcnt(0)"] + cvts(7, 2, PB[0]): P(x)
    P(f"s_mov_b32 s{sCnt}, 7\n.p2align 5\nK1_loop:")
    stage(P, 0, 1, 2, 3, 0, kvt('k', 3, 'x') + kvt('v', 0, 'x'), "s_waitcnt vmcnt(0)", adv(sKo) + adv(sVo))
    stage(P, 1, 3, 0, 1, 2, kvt('k', 1, 'x') + kvt('v', 2, 'x'), "s_waitcnt vmcnt(0)", adv(sKo) + adv(sVo) + [f"s_sub_u32 s{sCnt}, s{sCnt}, 1", f"s_cmp_lg_u32 s{sCnt}, 0"])
    P("s_cbranch_scc1 K1_loop")
    stage(P, 0, 1, 2, None, 0, kvt('v', 0, 'v15') + ounit(0), "WAITVM v15", [])
    Z = Sched(); pin = PB[1]; OB = PB[0]; gs = []
    OBUF = (KF, 0)
    for g in range(8):
        g0 = len(Z.G); gs.append(g0)
        for c in range(4):
            for j in range(4): Z.m(pv(g, c, j, pin))
        o = 0
        if g == 0:
            for i, e in enumerate(exps(3)): Z.put(i, 'v', e, 2)
            for x in cvts(7, 3, pin): Z.put(4, 'v', x)
            for n in range(8): Z.m(smf(n & 3, n >> 2, pin))
            o = 5
        if g < 7: rd = vread(g + 1, 0)
        else:
            rd = [f"ds_read_b128 {R('v', MN+8)}, v{MN+12}"] + [x for ks in range(8) for x in wread(OBUF[0], 0, ks)]
            Z.sc(g0, "WAITVM o0"); Z.sc(g0, "s_barrier")
        for i, x in enumerate(rd): Z.put(g0 + o + i//2, 'd', x)
        Z.sc(len(Z.G) - 1, "s_waitcnt lgkmcnt(0)")
    RR = MN
    it = []
    for c in range(4): it += [V(f"v_accvgpr_read_b32 v{RR+c}, a{L+4*c}"), V(f"v_accvgpr_read_b32 v{RR+4+c}, a{L+4*c+1}")]
    for c in range(4): it += [V(f"v_add_f32 v{RR+c}, v{RR+c}, v{RR+4+c}")]
    g, left = Z.fill(it, gs[1] + 4); assert not left
    g, left = Z.fill([('d', f"ds_bpermute_b32 v{RR+4+c}, v{vBP}, v{RR+c}", 1, []) for c in range(4)], g + 1); assert not left and g < gs[2], (g, gs)
    it = [V(f"v_rcp_f32 v{RR+c}, v{RR+4+c}") for c in range(4)]
    it += [V(f"v_add_f32 v{RR+4}, v{RR+4}, v{RR+5}"), V(f"v_add_f32 v{RR+6}, v{RR+6}, v{RR+7}"), V(f"v_add_f32 v{RR+4}, v{RR+4}, v{RR+6}"),
           V(f"v_cmp_ngt_f32 vcc, 0x5f800000, v{RR+4}"), V(f"v_mov_b32 v{MN+12}, {FLAG}"), V(f"v_lshl_add_u32 v{RR+5}, s{sW}, 2, v{MN+12}")]
    g, left = Z.fill(it, gs[2]); assert not left
    Z.sc(g + 2, "s_cmp_lg_u64 vcc, 0"); Z.sc(g + 2, "s_cselect_b32 s38, 1, 0")
    g, left = Z.fill([V(f"v_mov_b32 v{RR+4}, s38")], g + 3); assert not left
    g, left = Z.fill([('d', f"ds_write_b32 v{RR+5}, v{RR+4}", 1, [])], g + 1); assert not left and g < gs[6]
    gn = g
    g, left = Z.fill(ounit(1) + ounit(2), 9, gs[7], step=4); assert not left
    it = []; n = 0
    for db in range(8):
        for c in (0, 2, 1, 3):
            t = TMP + 4*(n % 8); n += 1
            e = gs[db+1] + 2 if db < 7 else 10**6
            it += [V(f"v_accvgpr_read_b32 v{t+i}, a{O+16*db+4*c+i}", e) for i in range(4)]
            it += [V(f"v_mul_f32 v{t+i}, v{t+i}, v{RR+c}") for i in range(4)]
            ob = OB + 32*(c & 1) + 4*((c >> 1)*4 + (db >> 1)) + 2*(db & 1)
            it += [V(f"v_cvt_pk_bf16_f32 v{ob+i}, v{t+2*i}, v{t+2*i+1}") for i in range(2)]
    g, left = Z.fill(it, gn)
    P.stats['normleft'] = len(left)
    P.gaps(Z.G)
    P(f"""v_or_b32 v{MN+8}, v{MN+8}, v{MN+9}
    v_or3_b32 v{MN+8}, v{MN+8}, v{MN+10}, v{MN+11}
    s_nop 0
    v_readfirstlane_b32 s38, v{MN+8}
    s_nop 1
    s_cmp_gt_u32 s38, s{sFB}
    s_cbranch_scc1 K1_fb""")
    emit_left(P, left)
    Z = Sched(); blk = {}; ST = PB[1]
    for u in range(9):
        for s in range(4):
            b = 4*u + s; g0 = len(Z.G); blk[b] = g0
            for cb in range(2):
                for ks in range(8):
                    Z.m(mf(R('v', ACC + 8*s + 4*cb), R('a', OBUF[b & 1] + 4*ks), R('v', OB + 32*cb + 4*ks), '0' if ks == 0 else None))
            if s == 3 and u < 8:
                Z.sc(g0, f"WAITVM o{u+1}"); Z.sc(g0, "s_barrier")
            if b < 35:
                for ks in range(8):
                    for x in wread(OBUF[(b+1) & 1], (s+1) & 3, ks): Z.put(g0 + 2*ks, 'd', x)
            if u < 8: Z.put(g0 + 1, 'v', f"v_add_u32 v{vW+s}, {hex(((OSL[(u+1) % 4] - OSL[u % 4])*SLOT) & 0xffffffff)}, v{vW+s}")
    def opost(u, s):
        it = []; st = []
        for cb in range(2):
            q = ST + 16*(u & 1) + 8*(s >> 1) + 4*cb; a = ACC + 8*s + 4*cb
            it += [V(f"v_cvt_pk_bf16_f32 v{q + 2*(s & 1) + i}, v{a+2*i}, v{a+2*i+1}") for i in range(2)]
            if s & 1:
                sb = sSt1 if cb else sSt0
                st.append(('d', f"buffer_store_dwordx4 {R('v', q)}, v{vST}, {R('s',WS)}, s51 offen", 2, [f"s_add_u32 s51, s{sb}, {u*1024 + (s >> 1)*512}"]))
        return it, st
    for b in range(35):
        it, st = opost(b >> 2, b & 3)
        g, left = Z.fill(it, blk[b+1] + 3, blk[b+1] + 16); assert not left
        g, left = Z.fill(st, g + 1, blk[b+1] + 16); assert not left
    for u in range(6):
        g, left = Z.fill(ounit(u + 3), blk[4*u+3] + 1, blk[4*u+7], step=3); assert not left
    P.gaps(Z.G)
    it, st = opost(8, 3); emit_left(P, it + st)
    P("K1_end:\ns_endpgm")
    P("K1_fb:", 'reset')
    P(f"""s_waitcnt vmcnt(0) lgkmcnt(0)
    s_mov_b32 s{sFB}, 1
    s_mov_b32 s{sKo}, 0""")
    for c in range(4): P(f"v_mov_b32 v{TMP+c}, 0xff800000")
    P("K1_fbt:\ns_barrier")
    emit_left(P, kvt('k', 0, 'x'))
    P(f"s_waitcnt vmcnt(0)\ns_barrier\ns_mov_b32 s{sCnt}, 0\nK1_fbk:")
    P(f"""s_lshr_b32 s38, s{sCnt}, 2
    s_mul_i32 s38, s38, 16640
    s_and_b32 s39, s{sCnt}, 3
    s_lshl_b32 s39, s39, 8
    s_add_u32 s38, s38, s39
    v_add_u32 v{TMP+8}, s38, v{vKA}""")
    for ds in range(4): P(f"ds_read_b128 {R('a', KF + 4*ds)}, v{TMP+8} offset:{64*ds}")
    for c in range(4):
        for ds in range(4): P(qk(0, c, ds, S + 4*c, '0'))
    for c in range(4):
        a = S + 4*c
        P(f"v_max3_f32 v{TMP+c}, v{TMP+c}, v{a}, v{a+1}\nv_max3_f32 v{TMP+c}, v{TMP+c}, v{a+2}, v{a+3}")
    P(f"""s_add_u32 s{sCnt}, s{sCnt}, 1
    s_cmp_lt_u32 s{sCnt}, 8
    s_cbranch_scc1 K1_fbk
    s_add_u32 s{sKo}, s{sKo}, 32768
    s_cmp_lt_u32 s{sKo}, 524288
    s_cbranch_scc1 K1_fbt
    s_barrier
    s_mov_b32 s{sKo}, s{sK0}
    s_mov_b32 s{sVo}, s{sK0}""")
    emit_left(P, kvt('k', 0, 'x'))
    for x in adv(sKo): P(x)
    emit_left(P, kvt('k', 1, 'x'))
    for x in adv(sKo): P(x)
    emit_left(P, kvt('v', 2, 'x'))
    for x in adv(sVo): P(x)
    for c in range(4): xmax(P, TMP + c, TMP + 4 + c)
    for c in range(4):
        for i in range(4): P(f"v_sub_f32 v{MN+4*c+i}, 0, v{TMP+c}")
    zero()
    P("s_waitcnt vmcnt(0)\ns_barrier")
    for x in kread(0, 0) + kread(1, 0): P(x)
    P("s_waitcnt lgkmcnt(0)\ns_branch K1_stageP")
    return P
```

```python
import struct, math
def f2u(x): return struct.unpack('<I', struct.pack('<f', x))[0]
_c0 = -2*math.log2(math.e)*math.sqrt(2/math.pi); _c1 = _c0*0.044715
kappa = (-_c1)**(1/3)
KAPPA = f2u(kappa); IK2 = f2u(1/kappa**2); C0P = f2u(_c0/kappa)
from fw import *
from small import H2, PART, NB
US = 12288; ACT = 6*US; LDS3 = ACT + 73728
vL, vDG, vDH, vDD, vST, vAW, vAR, vL16 = 1, 2, 3, 4, 5, 6, 7, 8
vW = 10
vWH = 14
AB = (16, 28); TMP = 40; GA = (64, 96); UA = 128; HV = 160; PRE = 192
sW, sFC, sRT = 3, 4, 5
WG, WU, WD, WS = 8, 12, 16, 20
sM, sT, sF0, sFh, sD0, sDh, sSt, sC0 = 40, 41, 42, 43, 44, 45, 46, 47
def hreg(cb, ks):
    i = ks*4 + cb
    return R('a', 4*i) if i < 64 else R('v', HV + 4*(i - 64))
def breg(cb, kk):
    i = kk*4 + cb
    return R('v', PRE + 4*i) if i < 12 else R('a', 4*(i - 12))
UN = []
for j in range(4):
    for m in 'gu':
        for i in range(6): UN.append((m, j, i))
for m in 'GU':
    for i in range(3): UN.append((m, 4, i))
for j in range(9):
    for i in range(3): UN.append(('d', j, i))
def dmas(u):
    m, j, i = UN[u]; it = []
    for x in range(3):
        if m in 'gu': v, r, sc = vDG, (WG if m == 'g' else WU), f"s_add_u32 s{sT}, s{sF0}, {j*128 + (3*i + x)*32*9216}"
        elif m in 'GU': v, r, sc = vDH, (WG if m == 'G' else WU), f"s_add_u32 s{sT}, s{sFh}, {(3*i + x)*64*9216}"
        else:
            kk = 3*i + x; v, r = vDD, WD
            sc = f"s_add_u32 s{sT}, s{sD0}, {j*128 + kk*32*1152}" if kk < 8 else f"s_add_u32 s{sT}, s{sDh}, {j*128}"
        it.append(('d', (f"buffer_load_dwordx4 v{v}, {R('s', r)}, s{sT} offen lds", f"u{u}"), 2, [f"s_add_u32 m0, s{sM}, {(u % 6)*US + x*4096}", sc]))
    return it
def reads(u, b):
    m, j, i = UN[u]; sl = u % 6; buf = AB[b]; o = (sl % 3)*US
    if m in 'GU': return [f"ds_read_b64_tr_b16 {R('v', buf + 4*x + 2*h, 2)}, v{vWH + sl//3} offset:{o + (2*(3*b + x) + h)*1024}" for x in range(3) for h in range(2)]
    return [f"ds_read_b64_tr_b16 {R('v', buf + 4*x + 2*h, 2)}, v{vW + 2*b + sl//3} offset:{o + (4*x + 2*h)*1024}" for x in range(3) for h in range(2)]
def acc(u, b, cb):
    m, j, i = UN[u]
    base = UA if m == 'u' else GA[0] + 16 if m == 'U' else GA[(j + (1 if m == 'd' else 0)) & 1]
    return base + (16*b if m not in 'GU' else 0) + 4*cb

def k3():
    P = Prog('k3')
    P(f"""s_cmp_ge_u32 s2, 256
    s_cbranch_scc1 K3_end
    s_load_dwordx4 s[28:31], s[0:1], 48
    s_load_dwordx2 s[32:33], s[0:1], 64
    s_load_dwordx2 s[36:37], s[0:1], 104
    v_lshrrev_b32 v16, 6, v0
    v_and_b32 v{vL}, 63, v0
    v_readfirstlane_b32 s{sW}, v16
    s_and_b32 s{sFC}, s2, 7
    s_lshl_b32 s{sFC}, s{sFC}, 1
    s_bfe_u32 s6, s2, 0x10003
    s_add_u32 s{sFC}, s{sFC}, s6
    s_lshr_b32 s{sRT}, s2, 4
    s_lshl_b32 s{sM}, s{sW}, 10
    s_mul_i32 s7, s{sFC}, 288
    s_lshl_b32 s38, s6, 5
    s_add_u32 s{sF0}, s7, s38
    s_lshl_b32 s38, s6, 8
    s_sub_u32 s{sFh}, s7, s38
    s_add_u32 s{sFh}, s{sFh}, 256
    s_mul_i32 s{sD0}, s{sF0}, 1152
    s_mul_i32 s{sDh}, s{sFh}, 1152
    s_lshl_b32 s{sF0}, s{sF0}, 1
    s_lshl_b32 s{sFh}, s{sFh}, 1
    s_mov_b32 s{sC0}, {hex(C0P)}
    v_lshlrev_b32 v{vL16}, 4, v{vL}
    v_bfe_u32 v18, v{vL}, 1, 2
    v_lshrrev_b32 v19, 4, v{vL}
    v_xor_b32 v18, v18, v19
    v_and_b32 v20, 1, v{vL}
    v_lshlrev_b32 v20, 4, v20
    v_lshl_add_u32 v21, v18, 5, v20
    v_lshrrev_b32 v22, 3, v0
    v_mul_u32_u24 v23, 9216, v22
    v_add_u32 v{vDG}, v23, v21
    v_mul_u32_u24 v23, 1152, v22
    v_add_u32 v{vDD}, v23, v21
    v_and_b32 v18, 1, v18
    v_lshl_add_u32 v21, v18, 5, v20
    v_lshrrev_b32 v22, 2, v0
    v_mul_u32_u24 v23, 9216, v22
    v_add_u32 v{vDH}, v23, v21
    s_and_b32 s38, s{sW}, 1
    s_lshr_b32 s39, s{sW}, 1
    s_lshl_b32 s6, s{sRT}, 3
    s_lshl_b32 s7, s38, 2
    s_add_u32 s6, s6, s7
    s_mul_i32 s7, s6, 18432
    s_waitcnt lgkmcnt(0)""")
    srd(P, WS, 36, 0x10000000); srd(P, WG, 28, 576*9216); srd(P, WU, 30, 576*9216); srd(P, WD, 32, 4608*1152)
    def hload(ks):
        it = []
        for cb in range(4):
            it.append(('d', f"buffer_load_dwordx4 {hreg(cb, ks)}, v{vL16}, {R('s',WS)}, s{sT} offen", 2, [f"s_add_u32 s{sT}, s7, {H2 + cb*18432 + ks*1024}"]))
        return it
    for u in range(6):
        emit_left(P, dmas(u))
        if u < 3:
            for ks in range(3*u, 3*u + 3): emit_left(P, hload(ks))
    P(f"""s_mul_i32 s6, s{sFC}, {NB}
    s_add_u32 s{sSt}, s6, s7
    s_lshl_b32 s6, s39, 9
    s_add_u32 s{sSt}, s{sSt}, s6
    s_add_u32 s{sSt}, s{sSt}, {PART}
    v_and_b32 v20, 15, v{vL}
    v_lshrrev_b32 v21, 3, v20
    v_mul_u32_u24 v21, 9216, v21
    v_and_b32 v22, 7, v{vL}
    v_lshl_add_u32 v22, v19, 3, v22
    v_lshl_add_u32 v{vST}, v22, 4, v21
    s_mul_i32 s6, s38, 36864
    s_add_u32 s6, s6, {ACT}
    v_add_u32 v{vAR}, s6, v{vL16}
    s_lshl_b32 s6, s39, 12
    v_add_u32 v{vAW}, s6, v{vAR}
    v_lshrrev_b32 v26, 2, v{vL}
    v_and_b32 v27, 3, v{vL}
    v_lshlrev_b32 v25, 7, v26
    v_lshl_add_u32 v25, v27, 3, v25
    v_bfe_u32 v24, v{vL}, 3, 2
    s_lshl_b32 s6, s39, 1""")
    for b in range(2):
        P(f"v_xor_b32 v23, s6, v24\nv_xor_b32 v23, {b}, v23\nv_lshl_add_u32 v{vW+2*b}, v23, 5, v25\nv_add_u32 v{vW+2*b+1}, {3*US}, v{vW+2*b}")
    P(f"""v_lshlrev_b32 v25, 6, v26
    v_lshl_add_u32 v25, v27, 3, v25
    v_and_b32 v23, 1, v19
    v_xor_b32 v23, s39, v23
    v_lshl_add_u32 v{vWH}, v23, 5, v25
    v_add_u32 v{vWH+1}, {3*US}, v{vWH}
    s_lshl_b32 s6, s39, 3
    v_add_u32 v9, s6, v{vAR}
    WAITVM u0
    s_barrier""")
    for x in reads(0, 0): P(x)
    NU = len(UN)
    def build(Z, u0, u1, st):
        for u in range(u0, u1):
            m, j, i = UN[u]
            for b in range(2):
                g0 = len(Z.G); st[(u, b)] = g0
                for cb in range(4):
                    for x in range(3):
                        if m == 'd': B = breg(cb, 3*i + x); first = i == 0 and x == 0
                        elif m in 'GU': B = hreg(cb, 6*i + 3*b + x); first = i == 0 and b == 0 and x == 0
                        else: B = hreg(cb, 3*i + x); first = i == 0 and x == 0
                        Z.m(mf(R('v', acc(u, b, cb)), R('v', AB[b] + 4*x), B, '0' if first else None))
                rd = reads(u, 1) if b == 0 else (reads(u + 1, 0) if u + 1 < NU else [])
                for n, x in enumerate(rd): Z.put(g0 + n, 'd', x)
                if b == 0 and u + 1 < NU:
                    Z.sc(g0 + 11, "s_waitcnt lgkmcnt(0)"); Z.sc(g0 + 11, f"WAITVM u{u+1}"); Z.sc(g0 + 11, "s_barrier")
        for u in range(u0, u1):
            if u + 6 < NU:
                g, left = Z.fill(dmas(u + 6), st[(u, 1)] + 6, st[(u, 1)] + 12, step=2); assert not left
    Z = Sched(); st = {}
    build(Z, 0, 54, st)
    hl = [it for ks in range(9, 18) for it in hload(ks)]
    g, left = Z.fill(hl, 0, st[(3, 0)]);
    if left:
        g, left = Z.fill(left, st[(3, 0)], st[(5, 0)]); assert not left
    ops = []
    def op(t, deps, e=0, key='v', el=None, acq=False, rel=False):
        ops.append(dict(t=t, key=key, cost=2 if t.split()[0] in TRANS else 1, deps=deps, e=e, g=None, el=el, acq=acq, rel=rel, j=j)); return len(ops) - 1
    dead = {}; lastw = {}
    for j in range(5):
        ug = 12*j + (5 if j < 4 else 2); uu = 12*j + (11 if j < 4 else 5)
        nb = 2 if j < 4 else 1
        G = GA[j & 1]
        eg = st[(ug + 1, 0)] + 3; eu = st.get((uu + 1, 0), 10**6) + 3
        for cb in range(4):
            o = TMP + 8 + 4*cb; cv = []
            for b in range(nb):
                fin = []
                for i in range(4):
                    x = G + 16*b + 4*cb + i; el = (j, x)
                    p = op(f"v_fma_f32 vT, -v{x}, v{x}, s{sC0}", [], eg, el=el, acq=True)
                    p = op(f"v_mul_f32 vT, vT, v{x}", [p], el=el)
                    p = op(f"v_exp_f32 vT, vT", [p], el=el)
                    p = op(f"v_add_f32 vT, 1.0, vT", [p], el=el)
                    p = op(f"v_rcp_f32 vT, vT", [p], el=el)
                    p = op(f"v_mul_f32 v{x}, v{x}, vT", [p], el=el, rel=True)
                    fin.append(op(f"v_mul_f32 v{x}, v{x}, v{(UA if j < 4 else GA[0] + 16)+16*b+4*cb+i}", [p], eu))
                x = G + 16*b + 4*cb
                for i in range(2): cv.append(op(f"v_cvt_pk_bf16_f32 v{o+2*b+i}, v{x+2*i}, v{x+2*i+1}", fin[2*i:2*i+2] + ([lastw[cb]] if cb in lastw else [])))
            if j < 4: lastw[cb] = op(f"ds_write_b128 v{vAW}, {R('v', o)} offset:{j*8192 + cb*1024}", cv, key='d')
            else: op(f"ds_write_b64 v9, {R('v', o, 2)} offset:{8*4096 + cb*1024}", cv, key='d')
        if j < 3: dead[j] = st[(12*(j+1) + 6, 0)]
    free = list(range(TMP, TMP + 8)) + list(range(240, 256)); held = {}
    todo = list(range(len(ops)))
    def ready(o, g):
        if o['e'] > g or (o['acq'] and not free): return False
        for d in o['deps']:
            dg = ops[d]['g']
            if dg is None or (dg == g and (o['key'] == 'd' or ops[d]['key'] == 'd')): return False
        return True
    def place(k, g):
        o = ops[k]; o['g'] = g; todo.remove(k)
        if o['acq']: held[o['el']] = free.pop(0)
        t = o['t'].replace('vT', f"v{held[o['el']]}") if o['el'] else o['t']
        if o['rel']: free.append(held.pop(o['el']))
        return t
    for g in range(len(Z.G)):
        while Z.G[g]['free'] > 0:
            cand = [k for k in todo[:400] if ops[k]['cost'] <= Z.G[g]['free'] and ready(ops[k], g)]
            if not cand: break
            tr = [k for k in cand if ops[k]['cost'] == 2]
            k = tr[0] if tr else cand[0]
            Z.put(g, ops[k]['key'], place(k, g), ops[k]['cost'])
    for j in dead:
        last = max(o['g'] if o['g'] is not None else 10**6 for o in ops if o['j'] == j)
        P.stats[f'slack{j}'] = dead[j] - last
        assert last < dead[j], (j, last, dead[j])
    left = []; g = 10**7
    while todo:
        g += 1
        cand = [k for k in todo if ready(ops[k], g)]
        for k in cand:
            if ready(ops[k], g): left.append((ops[k]['key'], place(k, g), 1, []))
    P.stats['geleft'] = len(left)
    pre = [('d', f"ds_read_b128 {breg(cb, kk)}, v{vAR} offset:{kk*4096 + cb*1024}", 1, []) for kk in range(3) for cb in range(4)]
    g, l2 = Z.fill(pre, st[(40, 0)])
    P.gaps(Z.G)
    emit_left(P, l2)
    for kk in range(3, 6):
        for cb in range(4): P(f"ds_read_b128 {breg(cb, kk)}, v{vAR} offset:{kk*4096 + cb*1024}")
    emit_left(P, left)
    P("s_waitcnt lgkmcnt(0)\ns_barrier")
    for kk in range(6, 9):
        for cb in range(4): P(f"ds_read_b128 {breg(cb, kk)}, v{vAR} offset:{kk*4096 + cb*1024}")
    Z = Sched(); st = {}
    build(Z, 54, NU, st)
    def post(j):
        A = GA[(j + 1) & 1]; it = []
        for cb in range(4):
            o = UA + 16*(j & 1) + 4*cb
            it += [V(f"v_cvt_pk_bf16_f32 v{o+2*b+i}, v{A+16*b+4*cb+2*i}, v{A+16*b+4*cb+2*i+1}") for b in range(2) for i in range(2)]
        sto = [('d', f"buffer_store_dwordx4 {R('v', UA + 16*(j & 1) + 4*cb)}, v{vST}, {R('s',WS)}, s48 offen", 2, [f"s_add_u32 s48, s{sSt}, {cb*18432 + j*1024}"]) for cb in range(4)]
        return it, sto
    for j in range(8):
        it, sto = post(j); u = 54 + 3*(j + 1)
        g, left = Z.fill(it, st[(u, 0)] + 3, st[(u + 2, 0)]); assert not left
        g, left = Z.fill(sto, g + 1, st[(u + 2, 1)], step=3); assert not left
    P.gaps(Z.G)
    it, sto = post(8); emit_left(P, it + sto)
    P("K3_end:\ns_endpgm")
    return P
```

```python
from fw import *
MODP = 0
MODF = 0x10000
XH   = 0x100000
X1   = 0x400000
H2   = 0x700000
PART = 0x1000000
NB = 2359296

def common(P, endl):
    P(f"""v_lshrrev_b32 v1, 6, v0
    v_and_b32 v2, 63, v0
    v_readfirstlane_b32 s3, v1
    v_and_b32 v3, 7, v2
    v_bfe_u32 v4, v2, 3, 2
    v_lshrrev_b32 v5, 5, v2""")
    P("""v_lshlrev_b32 v6, 6, v1
    v_lshl_add_u32 v6, v5, 5, v6
    v_lshl_add_u32 v6, v4, 2, v6
    s_lshl_b32 s4, s2, 3
    v_add_u32 v7, s4, v3
    s_movk_i32 s5, 1152
    v_mul_lo_u32 v7, v7, s5
    v_lshl_add_u32 v7, v6, 1, v7""")
def fragaddr(P, d):
    P(f"""s_lshr_b32 s6, s2, 1
    s_mul_i32 s6, s6, 18432
    s_and_b32 s7, s2, 1
    s_lshl_b32 s7, s7, 7
    s_add_u32 s6, s6, s7
    v_lshl_add_u32 v{d}, v1, 1, v5
    v_lshlrev_b32 v{d}, 10, v{d}
    v_lshl_add_u32 v{d}, v4, 8, v{d}
    v_lshl_add_u32 v{d}, v3, 4, v{d}
    v_add_u32 v{d}, s6, v{d}""")
def rowreduce(P, s, t, wa, ra, off, t4):
    P(f"""v_add_f32_dpp v{s}, v{s}, v{s} row_ror:8 row_mask:0xf bank_mask:0xf
    v_mov_b32 v{t}, v{s}
    v_permlane16_swap_b32 v{s}, v{t}
    v_add_f32 v{s}, v{s}, v{t}
    v_mov_b32 v{t}, v{s}
    v_permlane32_swap_b32 v{s}, v{t}
    v_add_f32 v{s}, v{s}, v{t}
    ds_write_b32 v{wa}, v{s} offset:{off}
    s_waitcnt lgkmcnt(0)
    s_barrier
    ds_read_b128 {R('v',t4)}, v{ra} offset:{off}
    ds_read_b128 {R('v',t4+4)}, v{ra} offset:{off+16}
    ds_read_b32 v{t4+8}, v{ra} offset:{off+32}""")
    P(f"v_add_f32 v{s}, v{t4}, v{t4+1}\nv_add_f32 v{t}, v{t4+2}, v{t4+3}")
    P(f"v_add_f32 v{s}, v{s}, v{t4+4}\nv_add_f32 v{t}, v{t}, v{t4+5}\nv_add_f32 v{s}, v{s}, v{t4+6}\nv_add_f32 v{t}, v{t}, v{t4+7}")
    P(f"v_add_f32 v{s}, v{s}, v{t4+8}\nv_add_f32 v{s}, v{s}, v{t}")
def layernorm(P, x, s, t, wa, ra, t4, mid=None):
    P(f"v_mul_u32_u24 v{ra}, 48, v3\nv_lshl_add_u32 v{wa}, v1, 2, v{ra}")
    P(f"v_add_f32 v{s}, v{x}, v{x+1}\nv_add_f32 v{t}, v{x+2}, v{x+3}")
    for e in range(4, 8, 2): P(f"v_add_f32 v{s}, v{s}, v{x+e}\nv_add_f32 v{t}, v{t}, v{x+e+1}")
    P(f"v_add_f32 v{s}, v{s}, v{t}")
    rowreduce(P, s, t, wa, ra, 0, t4)
    if mid: mid()
    P(f"v_mul_f32 v{s}, 0x3ae38e39, v{s}")
    for e in range(8): P(f"v_sub_f32 v{x+e}, v{x+e}, v{s}")
    P(f"v_mul_f32 v{s}, v{x}, v{x}\nv_mul_f32 v{t}, v{x+1}, v{x+1}")
    for e in range(2, 8, 2): P(f"v_fmac_f32 v{s}, v{x+e}, v{x+e}\nv_fmac_f32 v{t}, v{x+e+1}, v{x+e+1}")
    P(f"v_add_f32 v{s}, v{s}, v{t}")
    rowreduce(P, s, t, wa, ra, 512, t4)
    P(f"v_mov_b32 v{t}, 0x3727c5ac\nv_fmac_f32 v{t}, 0x3ae38e39, v{s}\nv_rsq_f32 v{t}, v{t}")
    for e in range(8): P(f"v_mul_f32 v{x+e}, v{x+e}, v{t}")
def unpack(P, d, s, n):
    for i in range(n): P(f"v_lshlrev_b32 v{d+2*i}, 16, v{s+i}\nv_and_b32 v{d+2*i+1}, 0xffff0000, v{s+i}")

def k0():
    P = Prog('k0')
    P("""s_cmp_ge_u32 s2, 256
    s_cbranch_scc1 K0_end
    s_load_dwordx2 s[8:9], s[0:1], 0
    s_load_dwordx4 s[12:15], s[0:1], 72
    s_load_dwordx2 s[10:11], s[0:1], 104""")
    common(P, 'K0_end')
    fragaddr(P, 8)
    P("""s_and_b32 s40, s2, 3
    s_mul_i32 s41, s40, 144
    v_lshrrev_b32 v9, 3, v0
    v_add_u32 v9, s41, v9
    s_movk_i32 s5, 6912
    v_mul_lo_u32 v10, v9, s5
    v_lshl_add_u32 v10, v3, 4, v10
    s_lshr_b32 s42, s2, 2
    s_lshl_b32 s43, s42, 7
    s_add_u32 s44, s43, 497664
    v_lshlrev_b32 v9, 1, v9
    s_waitcnt lgkmcnt(0)""")
    srd(P, 16, 8, NB); srd(P, 20, 12, 1152); srd(P, 24, 14, 576*6912); srd(P, 28, 10, 0x10000000)
    P("""buffer_load_dwordx4 v[12:15], v10, s[24:27], s43 offen
    buffer_load_dwordx4 v[16:19], v10, s[24:27], s44 offen
    buffer_load_ushort v20, v9, s[20:23], 0 offen
    buffer_load_ushort v21, v9, s[20:23], 0 offen offset:144
    buffer_load_dwordx2 v[22:23], v7, s[16:19], 0 offen
    buffer_load_dwordx2 v[24:25], v7, s[16:19], 0 offen offset:32""")
    for r in (20, 21):
        P(f"""v_lshlrev_b32 v{r}, 16, v{r}
        v_mul_f32 v26, 0xbfb8aa3b, v{r}
        v_exp_f32 v26, v26
        v_add_f32 v26, 1.0, v26
        v_rcp_f32 v26, v26
        v_mul_f32 v{r}, v{r}, v26
        v_cvt_pk_bf16_f32 v{r}, v{r}, v{r}
        v_lshlrev_b32 v{r}, 16, v{r}""")
    unpack(P, 32, 12, 4); unpack(P, 40, 16, 4)
    for e in range(8): P(f"v_mul_f32 v{32+e}, v{32+e}, v20")
    for e in range(8): P(f"v_fmac_f32 v{32+e}, v{40+e}, v21")
    for e in range(4): P(f"v_permlane32_swap_b32 v{32+e}, v{36+e}")
    for e in range(4): P(f"v_add_f32 v{32+e}, v{32+e}, v{36+e}")
    for e in range(2): P(f"v_permlane16_swap_b32 v{32+e}, v{34+e}")
    for e in range(2): P(f"v_add_f32 v{32+e}, v{32+e}, v{34+e}")
    for e in range(2): P(f"v_add_f32_dpp v{32+e}, v{32+e}, v{32+e} row_ror:8 row_mask:0xf bank_mask:0xf")
    P("""v_bfe_u32 v26, v2, 4, 1
    v_lshlrev_b32 v26, 3, v26
    v_lshl_add_u32 v26, v5, 4, v26
    v_lshl_add_u32 v26, v3, 5, v26
    v_lshl_add_u32 v26, v1, 8, v26
    ds_write_b64 v26, v[32:33] offset:1024""")
    unpack(P, 48, 22, 4)
    def mid():
        P("""s_cmp_lg_u32 s3, 0
        s_cbranch_scc1 K0_nog
        s_cmp_ge_u32 s2, 216
        s_cbranch_scc1 K0_nog
        v_lshlrev_b32 v26, 2, v2""")
        for w in range(9): P(f"ds_read_b32 v{32+w}, v26 offset:{1024+256*w}")
        for w in range(1, 9): P(f"v_add_f32 v32, v32, v{32+w}")
        P(f"""s_mul_i32 s45, s40, 13824
        s_lshl_b32 s46, s42, 8
        s_add_u32 s45, s45, s46
        buffer_store_dword v32, v26, s[28:31], s45 offen
        K0_nog:""")
    layernorm(P, 48, 27, 28, 29, 30, 56, mid)
    for i in range(4): P(f"v_cvt_pk_f16_f32 v{12+i}, v{48+2*i}, v{49+2*i}")
    P(f"s_mov_b32 s45, {XH}\nbuffer_store_dwordx4 v[12:15], v8, s[28:31], s45 offen")
    P("K0_end:\ns_endpgm")
    return P

def k24(last):
    nm = 'K4' if last else 'K2'
    P = Prog(nm)
    P(f"""s_cmp_ge_u32 s2, 256
    s_cbranch_scc1 {nm}_end
    s_load_dwordx2 s[8:9], s[0:1], {88 if last else 0}
    s_load_dwordx2 s[10:11], s[0:1], 104""")
    common(P, nm + '_end')
    if not last: fragaddr(P, 8)
    P(f"""s_mul_i32 s40, s2, 9216
    v_lshlrev_b32 v9, 4, v0
    v_add_u32 v9, s40, v9
    v_lshlrev_b32 v10, 2, v6
    s_waitcnt lgkmcnt(0)""")
    srd(P, 16, 8, NB); srd(P, 28, 10, 0x10000000)
    for s in range(16):
        P(f"s_mov_b32 s41, {PART + s*NB}\nbuffer_load_dwordx4 {R('v',64+4*s)}, v9, s[28:31], s41 offen")
    def ldmod(d, idx):
        P(f"s_mov_b32 s41, {MODF + idx*2304}\nbuffer_load_dwordx4 {R('v',d)}, v10, s[28:31], s41 offen\nbuffer_load_dwordx4 {R('v',d+4)}, v10, s[28:31], s41 offen offset:64")
    if last:
        P(f"s_mov_b32 s41, {X1}\nbuffer_load_dwordx4 v[12:15], v9, s[28:31], s41 offen")
        ldmod(16, 5)
    else:
        P("buffer_load_dwordx2 v[12:13], v7, s[16:19], 0 offen\nbuffer_load_dwordx2 v[14:15], v7, s[16:19], 0 offen offset:32")
        ldmod(16, 2); ldmod(32, 4); ldmod(40, 3)
    unpack(P, 48, 64, 4)
    for s in range(1, 16):
        unpack(P, 56, 64+4*s, 4)
        for e in range(0, 8, 2): P(f"v_pk_add_f32 v[{48+e}:{49+e}], v[{48+e}:{49+e}], v[{56+e}:{57+e}]")
    unpack(P, 56, 12, 4)
    for e in range(8): P(f"v_fmac_f32 v{56+e}, v{48+e}, v{16+e}")
    for i in range(4): P(f"v_cvt_pk_bf16_f32 v{12+i}, v{56+2*i}, v{57+2*i}")
    if last:
        P("buffer_store_dwordx2 v[12:13], v7, s[16:19], 0 offen\nbuffer_store_dwordx2 v[14:15], v7, s[16:19], 0 offen offset:32")
    else:
        P(f"s_mov_b32 s41, {X1}\nbuffer_store_dwordx4 v[12:15], v9, s[28:31], s41 offen")
        unpack(P, 48, 12, 4)
        layernorm(P, 48, 27, 28, 29, 30, 56)
        for e in range(8): P(f"v_fma_f32 v{48+e}, v{48+e}, v{32+e}, v{40+e}")
        for i in range(4): P(f"v_cvt_pk_bf16_f32 v{16+i}, v{48+2*i}, v{49+2*i}")
        P(f"s_mov_b32 s41, {H2}\nbuffer_store_dwordx4 v[16:19], v8, s[28:31], s41 offen")
    P(f"{nm}_end:\ns_endpgm")
    return P
```

```python
import sys
from fw import *
import small, k1, k3
NAME = 'adaLN_cond__gqa_block_cached__glu_gated_geglu__prompt'
def build():
    ks = [('k0_kernel', small.k0(), 576, 4096, 72, 72), (NAME + '_kernel', k1.k1(), 256, k1.LDS1, 512, 256), ('k2_kernel', small.k24(0), 576, 1024, 128, 128),
          ('k3_kernel', k3.k3(), 256, k3.LDS3, 512, 256), ('k4_kernel', small.k24(1), 576, 0, 128, 128)]
    ref = open('cdna_kernels/' + NAME + '.s.ref').read().split('\n')
    out = [l for l in ref[:15]]
    for n, p, blk, lds, vg, ac in ks: out.append(f"; @launch kernel={n} grid=(256,1,1) block=({blk},1,1) lds={lds}")
    out.append('.amdgcn_target "amdgcn-amd-amdhsa--gfx950"')
    txt = '\n'.join(out) + '\n'
    for n, p, blk, lds, vg, ac in ks:
        txt += header(n) + p.finish(); print(n, p.stats, file=sys.stderr)
    txt += '.section .rodata,"a"\n'
    for n, p, blk, lds, vg, ac in ks: txt += desc(n, vg, ac)
    return txt
if __name__ == '__main__':
    t = build(); path = sys.argv[1] if len(sys.argv) > 1 else 'cdna_kernels/' + NAME + '.s'
    open(path, 'w').write(t); print(len(t))
```

```python
class Asm:
    def __init__(self):
        self.lines = []
    def __call__(self, s=''):
        for l in s.split('\n'):
            self.lines.append(l)
    def text(self):
        return '\n'.join(self.lines) + '\n'

def kernel_header(name):
    return f""".text
.globl {name}
.p2align 8
.type {name},@function
{name}:"""

def kernel_desc(name, vgpr, accum, sgpr=102, ids='x'):
    s = f""".amdhsa_kernel {name}
  .amdhsa_next_free_vgpr {vgpr}
  .amdhsa_next_free_sgpr {sgpr}
  .amdhsa_accum_offset {accum}
  .amdhsa_group_segment_fixed_size 0
  .amdhsa_kernarg_size 112
  .amdhsa_user_sgpr_count 2
  .amdhsa_user_sgpr_kernarg_segment_ptr 1
  .amdhsa_system_sgpr_workgroup_id_x 1
  .amdhsa_float_denorm_mode_32 3
.end_amdhsa_kernel"""
    return s
```

```python
import sys
from asmlib import *

def gen(variants, path):
    a = Asm()
    for (name, nw, lds, vg, body, iters) in variants:
        a(f"; @launch kernel={name}_kernel grid=(256,1,1) block=({nw*64},1,1) lds={lds}")
    a('.amdgcn_target "amdgcn-amd-amdhsa--gfx950"')
    for vi, (name, nw, lds, vg, body, iters) in enumerate(variants):
        a(kernel_header(name + '_kernel'))
        a(f"""
    s_cmp_ge_u32 s2, 256
    s_cbranch_scc1 L_end_{name}
    s_load_dwordx2 s[4:5], s[0:1], 8
    s_load_dwordx2 s[6:7], s[0:1], 104
    s_waitcnt lgkmcnt(0)
    s_mov_b32 s8, s4
    s_mov_b32 s9, s5
    s_mov_b32 s10, 8388608
    s_mov_b32 s11, 0x00020000
    s_mov_b32 s12, s6
    s_mov_b32 s13, s7
    s_mov_b32 s14, 0x1000000
    s_mov_b32 s15, 0x00020000
    v_lshlrev_b32 v1, 4, v0
    s_and_b32 s3, s2, 7
    s_lshl_b32 s3, s3, 20
    v_lshrrev_b32 v2, 6, v0
    s_nop 1
    v_readfirstlane_b32 s20, v2
    """)
        nv = min(vg, 256)
        off = 0
        for r in range(4, nv, 4):
            a(f"    buffer_load_dwordx4 v[{r}:{r+3}], v1, s[8:11], s3 offen")
            a(f"    s_add_u32 s3, s3, 8192")
            a(f"    s_and_b32 s3, s3, 0x7fffff")
        a("    s_waitcnt vmcnt(0)")
        if vg > 256:
            for r in range(0, vg - 256):
                a(f"    v_accvgpr_write_b32 a{r}, v{4 + (r % (nv-4))}")
        if lds:
            a("    v_lshlrev_b32 v2, 4, v0")
            for o in range(0, lds, nw*64*16):
                a(f"    v_add_u32 v3, {o}, v2")
                a(f"    ds_write_b128 v3, v[{8 + 4*((o // (nw*64*16)) % 40)}:{11 + 4*((o // (nw*64*16)) % 40)}]")
            a("    s_waitcnt lgkmcnt(0)")
        a("    v_and_b32 v2, 63, v0")
        a("    v_lshlrev_b32 v2, 4, v2")
        a("    v_and_b32 v3, 63, v0")
        a("    v_lshlrev_b32 v3, 3, v3")
        a("    s_lshl_b32 s21, s20, 10")
        a("    s_mov_b32 m0, s21")
        a("    s_mov_b32 s22, 0")
        a("    s_barrier")
        a("    s_memtime s[24:25]")
        a("    s_memrealtime s[26:27]")
        a("    s_waitcnt lgkmcnt(0)")
        a(f"    s_mov_b32 s16, {iters}")
        a("    .p2align 6")
        a(f"L_loop_{name}:")
        for l in body: a("    " + l)
        a("    s_sub_u32 s16, s16, 1")
        a("    s_cmp_lg_u32 s16, 0")
        a(f"    s_cbranch_scc1 L_loop_{name}")
        a("    s_waitcnt vmcnt(0) lgkmcnt(0)")
        a("    s_memtime s[28:29]")
        a("    s_memrealtime s[30:31]")
        a("    s_waitcnt lgkmcnt(0)")
        a("    s_sub_u32 s28, s28, s24")
        a("    s_sub_u32 s30, s30, s26")
        a("    v_mov_b32 v4, s28")
        a("    v_mov_b32 v5, s30")
        a("    v_mov_b32 v6, s26")
        a("    v_mov_b32 v7, s24")
        a(f"    s_lshl_b32 s3, s2, 3")
        a(f"    s_add_u32 s3, s3, s20")
        a(f"    s_lshl_b32 s3, s3, 4")
        a(f"    s_add_u32 s3, s3, {vi*65536}")
        a("    v_mov_b32 v1, s3")
        a("    v_cmp_eq_u32 vcc, 0, v2")
        a("    s_and_saveexec_b64 s[32:33], vcc")
        a("    buffer_store_dwordx4 v[4:7], v1, s[12:15], 0 offen")
        a("    s_waitcnt vmcnt(0)")
        a(f"L_end_{name}:")
        a("    s_endpgm")
    a('.section .rodata,"a"')
    for (name, nw, lds, vg, body, iters) in variants:
        a(".p2align 6")
        a(kernel_desc(name + '_kernel', vg, min(vg, 256)))
    open(path, 'w').write(a.text())

def mf32(d, x, y, acc=False):
    p = 'a' if acc else 'v'
    return f"v_mfma_f32_32x32x16_bf16 {p}[{d}:{d+15}], v[{x}:{x+3}], v[{y}:{y+3}], {p}[{d}:{d+15}]"
def mf16(d, x, y, acc=False):
    p = 'a' if acc else 'v'
    return f"v_mfma_f32_16x16x32_bf16 {p}[{d}:{d+3}], v[{x}:{x+3}], v[{y}:{y+3}], {p}[{d}:{d+3}]"

if __name__ == '__main__':
    V = []
    b = []
    for i in range(64):
        b.append(mf32(16*(i % 8), 8 + 4*((i*3) % 16), 80 + 4*((i // 2) % 16), True))
    V.append(('bare32', 4, 0, 512, b, 32))
    b = []
    for i in range(128):
        b.append(mf16(4*(i % 32), 8 + 4*((i*3) % 16), 80 + 4*((i // 4) % 16), True))
    V.append(('bare16', 4, 0, 512, b, 32))
    def fill32(dma=False, nodsr=False):
        b = []
        for i in range(64):
            b.append(mf32(16*(i % 8), 8 + 4*((i*3) % 16), 80 + 4*((i // 2) % 16), True))
            b.append(f"v_exp_f32 v{160 + i % 32}, v{200 + i % 32}")
            b.append(f"v_add_f32 v{150 + i % 4}, v{160 + (i+16) % 32}, v{150 + i % 4}")
            if i % 2 == 0: b.append(f"v_cvt_pk_bf16_f32 v{240 + (i//2) % 8}, v{160 + (i+8) % 32}, v{160 + (i+9) % 32}")
            if not nodsr:
                if i < 32:
                    if i % 2 == 1: b.append(f"ds_read_b128 a[{128 + 4*((i//2) % 16)}:{131 + 4*((i//2) % 16)}], v2 offset:{1024*(i//2)}")
                else:
                    b.append(f"ds_read_b64_tr_b16 a[{192 + 2*(i % 32)}:{193 + 2*(i % 32)}], v3 offset:{16384 + 512*(i % 32)}")
            if dma and i % 8 == 3:
                b.append(f"buffer_load_dwordx4 v1, s[8:11], s22 offen lds")
                b.append(f"s_add_u32 s22, s22, 4096")
                b.append(f"s_and_b32 s22, s22, 0xfffff")
            if dma and i == 63:
                b.append("s_waitcnt vmcnt(8)")
                b.append("s_barrier")
        return b
    V.append(('f32nods', 4, 65536, 512, fill32(nodsr=True), 32))
    V.append(('f32ds', 4, 65536, 512, fill32(), 32))
    V.append(('f32dma', 4, 65536, 512, fill32(dma=True), 32))
    def fill16(dma=False):
        b = []
        for i in range(128):
            b.append(mf16(4*(i % 32), 8 + 4*((i*3) % 16), 80 + 4*((i // 4) % 16), True))
            j = i // 2
            if i % 2 == 0:
                b.append(f"v_exp_f32 v{160 + j % 32}, v{200 + j % 32}")
            else:
                b.append(f"v_add_f32 v{150 + j % 4}, v{160 + (j+16) % 32}, v{150 + j % 4}")
                if j % 2 == 0: b.append(f"v_cvt_pk_bf16_f32 v{240 + (j//2) % 8}, v{160 + (j+8) % 32}, v{160 + (j+9) % 32}")
                if j < 32:
                    if j % 2 == 1: b.append(f"ds_read_b128 a[{128 + 4*((j//2) % 16)}:{131 + 4*((j//2) % 16)}], v2 offset:{1024*(j//2)}")
                else:
                    b.append(f"ds_read_b64_tr_b16 a[{192 + 2*(j % 32)}:{193 + 2*(j % 32)}], v3 offset:{16384 + 512*(j % 32)}")
            if dma and i % 16 == 6:
                b.append(f"buffer_load_dwordx4 v1, s[8:11], s22 offen lds")
                b.append(f"s_add_u32 s22, s22, 4096")
                b.append(f"s_and_b32 s22, s22, 0xfffff")
            if dma and i == 127:
                b.append("s_waitcnt vmcnt(8)")
                b.append("s_barrier")
        return b
    V.append(('f16ds', 4, 65536, 512, fill16(), 32))
    V.append(('f16dma', 4, 65536, 512, fill16(dma=True), 32))
    gen(V, 'mb1.s')
```

```python
from mb1 import *
FL = 0x800000
def zero():
    b = ["s_lshl_b32 s40, s2, 13", f"s_add_u32 s40, s40, {FL}", "v_mov_b32 v8, 0", "v_mov_b32 v9, 0", "v_mov_b32 v10, 0", "v_mov_b32 v11, 0"]
    for i in range(8): b += [f"s_add_u32 s41, s40, {i*1024}", "buffer_store_dwordx4 v[8:11], v2, s[12:15], s41 offen"]
    return b
def pp(name, x, mode, N=32, same=False):
    b = [f"s_xor_b32 s44, s2, {x}", "s_lshl_b32 s40, s2, 7", "s_lshl_b32 s41, s44, 7", f"s_add_u32 s40, s40, {FL}", f"s_add_u32 s41, s41, {FL}",
         "v_mov_b32 v8, 1", "v_mov_b32 v9, 0", "s_add_u32 s46, s6, s41", "s_addc_u32 s47, s7, 0", "s_mov_b32 s48, 0", "s_mov_b32 s50, 1",
         f"s_and_b32 s45, s2, {x}", "s_cmp_lg_u32 s45, 0", f"s_cbranch_scc1 W_{name}", f"S_{name}:",
         "v_mov_b32 v8, s50", "buffer_store_dword v8, v9, s[12:15], s40 offen sc1"]
    if not same: b += ["s_add_u32 s40, s40, 32768"]
    b += ["s_add_u32 s48, s48, 1", f"s_cmp_ge_u32 s48, {2*N}", f"s_cbranch_scc1 E_{name}",
         f"W_{name}:", "s_mov_b32 s49, 0", "s_lshr_b32 s50, s48, 1", "s_add_u32 s50, s50, 1", f"P_{name}:"]
    if mode == 's': b += ["s_load_dwordx16 s[64:79], s[46:47], 0 glc", "s_waitcnt lgkmcnt(0)"]
    else: b += ["buffer_load_dword v10, v9, s[12:15], s41 offen sc1", "s_waitcnt vmcnt(0)", "v_readfirstlane_b32 s64, v10"]
    b += ["s_add_u32 s49, s49, 1", "s_cmp_ge_u32 s49, 2000", f"s_cbranch_scc1 E_{name}", "s_cmp_lt_u32 s64, s50", f"s_cbranch_scc1 P_{name}"]
    if not same: b += ["s_add_u32 s41, s41, 32768", "s_add_u32 s46, s46, 32768", "s_addc_u32 s47, s47, 0"]
    b += ["s_add_u32 s48, s48, 1", "s_lshr_b32 s50, s48, 1", "s_add_u32 s50, s50, 1", f"s_cmp_lt_u32 s48, {2*N}", f"s_cbranch_scc1 S_{name}", f"E_{name}:"]
    return b
V = []; L = 4096
for nm, x, mode, same in (('v1', 1, 'v', 0), ('s1', 1, 's', 0), ('v8', 8, 'v', 0), ('s8', 8, 's', 0), ('v1s', 1, 'v', 1), ('s1s', 1, 's', 1), ('v4', 4, 'v', 0), ('s4', 4, 's', 0)):
    V.append(('z' + nm, 1, L, 128, zero(), 1))
    V.append((nm, 1, L, 128, pp(nm, x, mode, same=same), 1))
gen(V, 'mb13.s')
```

```python
import re, os
PROF = int(os.environ.get('PROF', '0'))
TRANS = ('v_exp_f32','v_log_f32','v_rcp_f32','v_rsq_f32','v_sqrt_f32','v_sin_f32','v_cos_f32')
def regs(tok):
    tok = tok.strip().lstrip('-').strip('|')
    m = re.fullmatch(r'([vas])\[(\d+):(\d+)\]', tok)
    if m: return [f"{m.group(1)}{i}" for i in range(int(m.group(2)), int(m.group(3))+1)]
    if re.fullmatch(r'[vas]\d+', tok): return [tok]
    if tok == 'vcc': return ['vcc']
    if tok == 'exec': return ['exec']
    if tok == 'm0': return ['m0']
    return []
class I:
    __slots__ = ('t','op','k','r','w','tag','srcC','ab','wide','dpp')
    def __init__(s, t, tag=None):
        s.t = t; s.tag = tag; s.srcC = []; s.ab = []; s.wide = False
        t0 = t.split(';')[0].strip()
        s.dpp = ('row_' in t0) or ('quad_perm' in t0)
        if t0.endswith(':') or t0.startswith('.'):
            s.op = t0; s.k = 'label' if t0.endswith(':') else 'dir'; s.r = []; s.w = []; return
        t0 = re.sub(r'\w+:\[[^\]]*\]', '', t0).strip()
        p = t0.split(None, 1); op = p[0]; s.op = op
        ops = [x.strip() for x in p[1].split(',')] if len(p) > 1 else []
        if ops:
            last = ops[-1].split()
            mods = last[1:]; ops[-1] = last[0] if last else ''
        else: mods = []
        R = lambda lst: [x for o in lst for x in regs(o)]
        if op.startswith('v_mfma'):
            s.k = 'mfma'; s.w = R(ops[:1]); s.ab = R(ops[1:3]); s.srcC = R(ops[3:4]); s.r = s.ab + s.srcC
        elif op.startswith('v_smfmac'):
            s.k = 'mfma'; s.w = R(ops[:1]); s.ab = R(ops[1:4]); s.srcC = R(ops[:1]); s.r = s.ab + s.srcC
        elif op.startswith('ds_read') or op.startswith('ds_bpermute') or op.startswith('ds_swizzle'):
            s.k = 'ds'; s.w = R(ops[:1]); s.r = R(ops[1:])
        elif op.startswith('ds_'):
            s.k = 'ds'; s.w = []; s.r = R(ops)
        elif op.startswith('buffer_load') or op.startswith('global_load'):
            s.k = 'vm'
            if 'lds' in mods: s.w = []; s.r = R(ops) + ['m0']
            elif tag == 'pf': s.w = []; s.r = R(ops[1:])
            else: s.w = R(ops[:1]); s.r = R(ops[1:])
        elif op.startswith('buffer_store') or op.startswith('global_store') or op.startswith('buffer_atomic'):
            s.k = 'vm'; s.w = []; s.r = R(ops); s.wide = op.endswith('x4') or op.endswith('x3')
            if s.wide: s.ab = R(ops[:1])
        elif op.startswith('buffer_'):
            s.k = 'vm'; s.w = []; s.r = []
        elif op.startswith('s_load') or op.startswith('s_memtime') or op.startswith('s_memrealtime'):
            s.k = 'smem'; s.w = R(ops[:1]); s.r = R(ops[1:])
        elif op == 's_waitcnt': s.k = 'wait'; s.w = []; s.r = []
        elif op == 'WAITVM': s.k = 'waitvm'; s.w = []; s.r = []
        elif op == 's_barrier': s.k = 'bar'; s.w = []; s.r = []
        elif op == 's_nop': s.k = 'nop'; s.w = []; s.r = []
        elif op.startswith('s_cbranch') or op in ('s_branch', 's_endpgm'):
            s.k = 'br'; s.w = []; s.r = []
        elif op.startswith('s_cmp') or op in ('s_setprio', 's_sleep'):
            s.k = 'salu'; s.w = []; s.r = R(ops)
        elif op.startswith('s_'):
            s.k = 'salu'; s.w = R(ops[:1]); s.r = R(ops[1:])
            if 'saveexec' in op: s.w = s.w + ['exec']
        elif op.startswith('v_'):
            s.k = 'valu'
            if 'permlane' in op and 'swap' in op: s.w = R(ops[:2]); s.r = R(ops[:2])
            else:
                s.w = R(ops[:1]); s.r = R(ops[1:])
                if op.startswith('v_fmac') or op.startswith('v_mac') or op.startswith('v_dot2c') or s.dpp: s.r = s.r + s.w
                if op.startswith('v_cndmask') and len(ops) == 3: s.r = s.r + ['vcc']
                if '_co_' in op: s.w = R(ops[:2]); s.r = R(ops[2:])
        else: raise Exception('unknown op ' + t)
    def ws(s):
        if s.k == 'nop': return int(s.t.split()[1], 0) + 1
        if s.k in ('label', 'dir', 'waitvm'): return 0
        return 1

def need(p, c):
    n = 0
    pw = set(p.w)
    if p.k == 'valu':
        vw = {x for x in pw if x[0] in 'va' and x != 'vcc'}
        sw = pw - vw
        if c.k == 'mfma' and vw & set(c.r): n = max(n, 2)
        if c.k == 'valu':
            if p.op in TRANS and vw & set(c.r): n = max(n, 1)
            if ('permlane' in c.op or c.dpp) and vw & set(c.r): n = max(n, 2)
            if c.op.startswith('v_read') and vw & set(c.r): n = max(n, 1)
            if sw & set(c.r): n = max(n, 2)
            if 'mix' in p.op and p.op != 'v_fma_mix_f32' and vw & set(c.r + c.w): n = max(n, 1)
        if c.k == 'vm' and sw & set(c.r): n = max(n, 5)
        if p.op.startswith('v_dot') and c.op != p.op and vw & set(c.r + c.w): n = max(n, 3)
    if p.k == 'mfma':
        big = 12 if p.op.startswith('v_smfmac') else 8
        if c.k == 'mfma':
            if pw & set(c.ab): n = max(n, big)
            if pw & set(c.srcC) and (c.srcC != p.w or p.op != c.op): n = max(n, big - 2)
            if pw & set(c.w) and not (pw & set(c.srcC)): n = max(n, 0)
        elif c.k in ('valu', 'ds', 'vm'):
            if pw & set(c.r + c.w): n = max(n, big)
            if c.k == 'valu' and set(p.srcC) & set(c.w): n = max(n, 3 if big == 8 else 7)
    if p.k == 'salu' and 'm0' in pw and c.k == 'vm' and 'm0' in c.r: n = max(n, 1)
    if p.k == 'vm' and p.wide and set(p.ab) & set(c.w): n = max(n, 2 if c.k in ('valu', 'mfma') else 1)
    return n

class Prog:
    def __init__(s, name):
        s.name = name; s.ins = []; s.stats = {}
    def __call__(s, text, tag=None):
        for l in text.split('\n'):
            l = l.strip()
            if l and not l.startswith(';'): s.ins.append(I(l, tag))
    def stamptext(s, real=False, name=None):
        if not PROF: return []
        if name and name[0] not in os.environ.get('STG', 'sx'): return []
        s.stats.setdefault('names', []).append(name or '')
        n = s.stats.get('stamps', 0); s.stats['stamps'] = n + 1
        assert n < 20
        r = [f"s_mov_b32 s{80+n-1}, s100"] if n else []
        return r + [f"{'s_memrealtime' if real or PROF == 2 else 's_memtime'} s[100:101]"]
    def stamp(s, real=False, wait=False, name=None):
        if isinstance(real, str): name = real; real = False
        t = s.stamptext(real, name)
        if t and (wait or (name and name[-1] == '!')): s("s_waitcnt lgkmcnt(0)")
        for x in t: s(x)
    def stampout(s, kidx, ws, wave):
        if not PROF: return
        s.stamp(False, True); s.stamp(True, True)
        n = s.stats['stamps']
        s(f"s_waitcnt lgkmcnt(0)\ns_mov_b32 s{80+n-1}, s100\ns_lshl_b32 s62, s2, 4\ns_add_u32 s62, s62, s{wave}\ns_lshl_b32 s62, s62, 7\ns_add_u32 s62, s62, {0x8000000 + kidx*0x100000}\nv_mov_b32 v0, 0")
        for i in range(n): s(f"v_mov_b32 v1, s{80+i}\nbuffer_store_dword v1, v0, s[{ws}:{ws+3}], s62 offen offset:{4*i}\ns_nop 0")
    def gaps(s, G):
        for g in G:
            if g.get('m'): s(g['m'])
            for key in ('s', 'd', 'v'):
                for x in g.get(key, []):
                    if isinstance(x, tuple): s(x[0], x[1])
                    else: s(x)
    def autowait(s):
        out = []; cnt = {'ds': [], 'vm': []}
        lastm = -1
        def setwait(pos, kind, n):
            name = 'lgkmcnt' if kind == 'ds' else 'vmcnt'
            if pos < len(out) and out[pos].k == 'wait' and out[pos].tag == 'auto':
                d = dict(re.findall(r'(\w+)\((\d+)\)', out[pos].t))
                d[name] = min(int(d.get(name, 99)), n)
                out[pos] = I('s_waitcnt ' + ' '.join(f"{k}({v})" for k, v in sorted(d.items(), reverse=True)), 'auto')
            else:
                out.insert(pos, I(f"s_waitcnt {name}({n})", 'auto'))
                for kk in cnt:
                    for e in cnt[kk]:
                        if e[0] >= pos: e[0] += 1
        for c in s.ins:
            if c.k in ('label', 'br'):
                for kk in (cnt if c.tag != 'keep' else ()):
                    bad = [e[1].t for e in cnt[kk] if e[1].w]
                    assert not bad, f"{s.name}: pending reg loads at {c.t}: {bad[:3]}"
                lastm = -1
                if c.k == 'label' and c.tag == 'reset': cnt = {'ds': [], 'vm': []}
            if c.k == 'waitvm':
                tg = c.t.split()[1]
                idx = [i for i, e in enumerate(cnt['vm']) if e[1].tag == tg]
                if idx:
                    n = min(63, len(cnt['vm']) - 1 - idx[-1])
                    out.append(I(f"s_waitcnt vmcnt({n})"))
                    cnt['vm'] = cnt['vm'][len(cnt['vm']) - n:] if n else []
                continue
            if c.k == 'wait':
                d = dict(re.findall(r'(\w+)\((\d+)\)', c.t))
                for kk, nm in (('ds', 'lgkmcnt'), ('vm', 'vmcnt')):
                    if nm in d:
                        n = int(d[nm]); cnt[kk] = cnt[kk][len(cnt[kk]) - n:] if n and len(cnt[kk]) > n else (cnt[kk] if n else [])
            for kk, mx in (('ds', 15), ('vm', 63)):
                touch = set(c.r) | (set(c.w) if c.k != kk else set())
                idx = [i for i, e in enumerate(cnt[kk]) if touch & set(e[1].w)]
                if idx:
                    pi = idx[-1]; ppos = cnt[kk][pi][0]
                    pos = lastm + 1 if (lastm >= 0 and ppos <= lastm) else len(out)
                    if pos == len(out) and lastm >= 0 and pos != lastm + 1: s.stats['latewait'] = s.stats.get('latewait', 0) + 1
                    before = [i for i, e in enumerate(cnt[kk]) if e[0] < pos]
                    n = min(mx, before[-1] - pi)
                    setwait(pos, kk, n)
                    cnt[kk] = cnt[kk][before[-1] + 1 - n:]
            out.append(c)
            if c.k in ('ds', 'vm'): cnt[c.k].append([len(out) - 1, c])
            if c.k == 'smem': pass
            if c.k == 'mfma': lastm = len(out) - 1
        s.ins = out
    def pad(s, seq=None, fix=True):
        out = []; nn = 0
        for c in (seq if seq is not None else s.ins):
            if c.ws() and c.k not in ('nop', 'wait', 'bar', 'br'):
                d = 0; req = 0
                for p in reversed(out):
                    n = need(p, c)
                    if n - d > req: req = n - d
                    d += p.ws()
                    if d >= 12: break
                if req > 0:
                    assert fix, f"{s.name}: hazard across back-edge before {c.t}"
                    out.append(I(f"s_nop {req-1}")); nn += 1
            out.append(c)
        if fix: s.ins = out; s.stats['nops'] = nn
    def checkedges(s):
        lab = {c.op[:-1]: i for i, c in enumerate(s.ins) if c.k == 'label'}
        for i, c in enumerate(s.ins):
            if c.k == 'br' and c.op != 's_endpgm':
                j = lab[c.t.split()[1]]
                s.pad(s.ins[max(0, i-14):i+1] + s.ins[j:j+14], fix=False)
    def finish(s):
        s.autowait(); s.pad(); s.checkedges()
        s.stats['n'] = len(s.ins)
        return '\n'.join(c.t for c in s.ins) + '\n'

def codepf(P, n, va, vd, sa):
    P(f"s_getpc_b64 s[{sa}:{sa+1}]\nv_lshlrev_b32 v{va}, 7, v0\nv_mov_b32 v{va+1}, s{sa+1}\nv_add_co_u32 v{va}, vcc, s{sa}, v{va}\nv_addc_co_u32 v{va+1}, vcc, 0, v{va+1}, vcc")
    for i in range(n):
        P(f"global_load_dword v{vd}, v[{va}:{va+1}], off")
        if i + 1 < n: P(f"v_add_co_u32 v{va}, vcc, 0x8000, v{va}\nv_addc_co_u32 v{va+1}, vcc, 0, v{va+1}, vcc")
def header(name):
    return f".text\n.globl {name}\n.p2align 8\n.type {name},@function\n{name}:\n"
def desc(name, vgpr, accum, sgpr=102):
    return f""".p2align 6
.amdhsa_kernel {name}
  .amdhsa_next_free_vgpr {vgpr}
  .amdhsa_next_free_sgpr {sgpr}
  .amdhsa_accum_offset {accum}
  .amdhsa_group_segment_fixed_size 0
  .amdhsa_kernarg_size 112
  .amdhsa_user_sgpr_count 2
  .amdhsa_user_sgpr_kernarg_segment_ptr 1
  .amdhsa_system_sgpr_workgroup_id_x 1
  .amdhsa_float_denorm_mode_32 3
.end_amdhsa_kernel
"""
def R(p, b, n=4): return f"{p}[{b}:{b+n-1}]" if n > 1 else f"{p}{b}"
def srd(P, d, base, size, off=None):
    if off is None:
        P(f"s_mov_b32 s{d}, s{base}\ns_mov_b32 s{d+1}, s{base+1}")
    else:
        P(f"s_add_u32 s{d}, s{base}, {off}\ns_addc_u32 s{d+1}, s{base+1}, 0")
    P(f"s_mov_b32 s{d+2}, {size}\ns_mov_b32 s{d+3}, 0x20000")

def mf(d, a, b, c=None):
    return f"v_mfma_f32_16x16x32_bf16 {d}, {a}, {b}, {d if c is None else c}"
class Sched:
    def __init__(s): s.G = []
    def m(s, text):
        s.G.append(dict(m=text, s=[], d=[], v=[], free=2)); return len(s.G) - 1
    def put(s, g, key, x, cost=1):
        s.G[g][key].append(x); s.G[g]['free'] -= cost
    def sc(s, g, x): s.G[g]['s'].append(x)
    def fill(s, items, start, end=None, step=1):
        g = start; end = len(s.G) if end is None else end
        for n, it in enumerate(items):
            key, x, cost, sca = it[:4]
            if len(it) > 4: g = max(g, it[4])
            while g < end and (s.G[g]['free'] < cost or (sca and len(s.G[g]['s']) + len(sca) > 2)): g += 1
            if g >= end: return g, items[n:]
            s.put(g, key, x, cost)
            for y in sca: s.sc(g, y)
            if cost == 2: g += step
        return g, []
def V(x, e=None): return ('v', x, 2 if x.split()[0] in TRANS else 1, []) + ((e,) if e is not None else ())
def emit_left(P, left):
    for it in left:
        for y in it[3]: P(y)
        x = it[1]
        if isinstance(x, tuple): P(x[0], x[1])
        else: P(x)
```

```python
from fw import *
from small import MODF, XH, PART, NB, FLAGS, H2
import k3, xch
SLOT = 36864
MODL = 4*SLOT; FLAG = MODL + 8192
MAP = int(os.environ.get('MAP', '16'))
vL, vDQ, vDO, vDKV, vKA, vKB, vVA, vVB, vST, vIDX, vBP = 1, 2, 3, 4, 5, 6, 7, 8, 9, 10, 11
vW = 12; MN = 16; TMP = 32; ACC = 16; H = 48; S = 48; PB = (64, 128); Q = 192
O = 0; KF = 128; VF = 160; L = 200; ONES = 216
sW, sKV, sQT = 3, 4, 5
WQ, KS, VS, WO, WS = 8, 12, 16, 20, 24
sM, sMK, sMV, sKo, sVo, sT, sCnt, sFB, sSt0, sSt1, sK0 = 40, 41, 42, 43, 44, 45, 46, 47, 48, 49, 50
sPo, sPa, PF = 55, 60, 56
vPF = vDQ

def dma(kind, i, slot, base, tag):
    if kind == 'q':  sc = [f"s_add_u32 m0, s{sM}, {slot*SLOT + i*4096}", f"s_mov_b32 s{sT}, {base + i*32*8192}"]; v, r = vDQ, WQ
    if kind == 'o':  sc = [f"s_add_u32 m0, s{sM}, {slot*SLOT + i*4096}", f"s_mov_b32 s{sT}, {base + i*32*1152}"]; v, r = vDO, WO
    if kind == 'k':  sc = [f"s_add_u32 m0, s{sMK}, {slot*SLOT + i*4160}", f"s_add_u32 s{sT}, s{sKo}, {i*4096}"]; v, r = vDKV, KS
    if kind == 'v':  sc = [f"s_add_u32 m0, s{sMV}, {slot*SLOT + i*4224}", f"s_add_u32 s{sT}, s{sVo}, {i*4096}"]; v, r = vDKV, VS
    return ('d', (f"buffer_load_dwordx4 v{v}, {R('s',r)}, s{sT} offen lds", tag), 2, sc)
def qunit(u): return [dma('q', i, u % 4, (u >> 1)*128 + (u & 1)*288*8192, f"q{u}") for i in range(9)]
OSL = [3, 1, 2, 0]
def ounit(u): return [dma('o', i, OSL[u % 4], u*128, f"o{u}") for i in range(8)]
def kvt(kind, slot, tag): return [dma(kind, i, slot, 0, tag) for i in range(8)]
def adv(s): return [f"s_add_u32 s{s}, s{s}, 32768", f"s_and_b32 s{s}, s{s}, 0x7ffff"]
def kread(kb, slot):
    return [f"ds_read_b128 {R('a', KF + 16*(kb & 1) + 4*ds)}, v{vKA if slot < 2 else vKB} offset:{(slot & 1)*SLOT + 16640*(kb >> 2) + 256*(kb & 3) + 64*ds}" for ds in range(4)]
def vread(db, slot):
    return [f"ds_read_b64_tr_b16 {R('a', VF + 16*(db & 1) + 2*kb, 2)}, v{vVA if slot < 2 else vVB} offset:{(slot & 1)*SLOT + 16896*(kb >> 2) + 256*(kb & 3) + 32*db}" for kb in range(8)]
def wread(buf, s, ks):
    return [f"ds_read_b64_tr_b16 {R('a', buf + 4*ks + 2*h, 2)}, v{vW+s} offset:{(4*ks + 2*h)*1024}" for h in range(2)]
def qk(kb, c, ds, d, c0):
    return mf(R('v', d), R('a', KF + 16*(kb & 1) + 4*ds), R('v', Q + 16*c + 4*ds), c0 if ds == 0 else None)
def pv(db, c, j, pb):
    return mf(R('a', O + 16*db + 4*c), R('a', VF + 16*(db & 1) + 4*j), R('v', pb + 16*c + 4*j))
def smf(c, h, pb): return f"v_smfmac_f32_16x16x64_bf16 {R('a', L + 4*c)}, {R('a', ONES)}, {R('v', pb + 16*c + 8*h, 8)}, v{vIDX}"
def exps(c): return [f"v_exp_f32 v{S+4*c+i}, v{S+4*c+i}" for i in range(4)]
def cvts(kb, c, pb): return [f"v_cvt_pk_bf16_f32 v{pb+16*c+2*kb+i}, v{S+4*c+2*i}, v{S+4*c+2*i+1}" for i in range(2)]
def xmax(P, t, u):
    P(f"v_mov_b32 v{u}, v{t}\nv_permlane16_swap_b32 v{t}, v{u}\nv_max_f32 v{t}, v{t}, v{u}\nv_mov_b32 v{u}, v{t}\nv_permlane32_swap_b32 v{t}, v{u}\nv_max_f32 v{t}, v{t}, v{u}")

def stage(P, par, kslot, vslot, nk, nv, dmas, wait, post):
    Z = Sched(); pin, pout = PB[par], PB[par ^ 1]
    for g in range(8):
        g0 = len(Z.G)
        for c in range(4):
            w0 = len(Z.G)
            for ds in range(4): Z.m(qk(g, c, ds, S + 4*c, R('v', MN + 4*c)))
            for j in range(4): Z.m(pv(g, c, j, pin))
            pc = (c - 1) & 3; pkb = g if c else g - 1
            e = exps(pc); cv = cvts(pkb & 7, pc, pout if pkb >= 0 else pin)
            for i in range(4): Z.put(w0 + 2*i, 'v', e[i], 2)
            Z.put(w0 + 3, 'v', cv[0]); Z.put(w0 + 7, 'v', cv[1])
        Z.m(smf(g >> 1, g & 1, pin))
        if g < 7: rd = kread(g + 1, kslot) + vread(g + 1, vslot)
        else:
            rd = (kread(0, nk) if nk is not None else []) + vread(0, nv)
            Z.sc(g0, wait); Z.sc(g0, "s_barrier")
        pos = [g0 + 8*w + o for w in range(3) for o in (1, 1, 3, 7)]
        for x, p in zip(rd, pos): Z.put(p, 'd', x)
        Z.sc(len(Z.G) - 1, "s_waitcnt lgkmcnt(0)")
    g, left = Z.fill(dmas, 0, 33*6); assert not left
    for i, x in enumerate(post): Z.sc(33*6 + 2 + i, x)
    ab = os.environ.get('ABL', '')
    for gp in Z.G:
        if 'r' in ab: gp['d'] = [x for x in gp['d'] if isinstance(x, tuple)]
        if 'k' in ab: gp['d'] = [x for x in gp['d'] if isinstance(x, tuple) or 'tr' in x]
        if 'd' in ab: gp['d'] = [x for x in gp['d'] if not isinstance(x, tuple) or x[1] != 'x']
        if 'e' in ab: gp['v'] = [x.replace('v_exp_f32', 'v_mov_b32') for x in gp['v']]
        if 'E' in ab: gp['v'] = [x for x in gp['v'] if 'v_exp' not in x]
        if 'c' in ab: gp['v'] = [x for x in gp['v'] if 'v_cvt' not in x]
        if 's' in ab and 'smfmac' in gp['m']: gp['m'] = None
    P.gaps(Z.G)

def idmap():
    if MAP == 16: return f"""s_and_b32 s{sKV}, s2, 7
    s_lshl_b32 s{sKV}, s{sKV}, 1
    s_bfe_u32 s6, s2, 0x10003
    s_add_u32 s{sKV}, s{sKV}, s6
    s_lshr_b32 s{sQT}, s2, 4"""
    return f"""s_and_b32 s{sKV}, s2, 3
    s_lshl_b32 s{sKV}, s{sKV}, 2
    s_bfe_u32 s6, s2, 0x20003
    s_add_u32 s{sKV}, s{sKV}, s6
    s_bfe_u32 s6, s2, 0x10002
    s_lshl_b32 s6, s6, 3
    s_lshr_b32 s{sQT}, s2, 5
    s_add_u32 s{sQT}, s{sQT}, s6"""
def pfsetup(P):
    t = TMP
    P(f"""s_cmp_eq_u32 s{sW}, 1
    s_cselect_b64 s[{PF}:{PF+1}], s[28:29], s[70:71]
    s_cmp_eq_u32 s{sW}, 2
    s_cselect_b64 s[{PF}:{PF+1}], s[30:31], s[{PF}:{PF+1}]
    s_cmp_eq_u32 s{sW}, 3
    s_cselect_b64 s[{PF}:{PF+1}], s[32:33], s[{PF}:{PF+1}]
    s_cselect_b32 s38, 27, 24
    s_lshl_b32 s{sPa}, s38, 7
    s_lshl_b32 s39, s{sKV}, 4
    s_add_u32 s39, s39, s{sQT}
    s_mul_i32 s39, s39, s{sPa}
    s_mul_i32 s{sPo}, s39, 6
    s_mul_i32 s39, s{sKV}, 576
    s_and_b32 s39, s39, 0xffffff80
    s_mul_i32 s6, s{sQT}, {36*9216}
    s_add_u32 s39, s39, s6
    s_add_u32 s6, s{sW}, 1
    s_bitcmp1_b32 s6, 1
    s_cselect_b32 s{sPo}, s39, s{sPo}
    s_cselect_b32 s{sPa}, {6*9216}, s{sPa}
    s_cselect_b32 s38, 30, s38
    s_cselect_b32 s39, {9216 - 640}, 0
    s_mov_b32 s{PF+2}, {576*9216}
    s_cmp_eq_u32 s{sW}, 0
    s_cselect_b32 s{PF+2}, {4096*1152}, s{PF+2}
    s_mov_b32 s{PF+3}, 0x20000
    v_mul_u32_u24 v{t}, 52, v{vL}
    v_lshrrev_b32 v{t}, 8, v{t}
    v_mul_u32_u24 v{t}, s39, v{t}
    v_lshl_add_u32 v{t}, v{vL}, 7, v{t}
    v_mov_b32 v{vPF}, 0x40000000
    v_cmp_gt_u32 vcc, s38, v{vL}
    v_cndmask_b32 v{vPF}, v{vPF}, v{t}, vcc""")
def k1():
    P = Prog('k1')
    P(f"""s_cmp_ge_u32 s2, 256
    s_cbranch_scc1 K1_end""")
    P.stamp(True); P.stamp(False, True)
    P(f"""s_load_dwordx2 s[36:37], s[0:1], 104
    s_load_dwordx8 s[64:71], s[0:1], 8
    s_load_dwordx4 s[28:31], s[0:1], 48
    s_load_dwordx2 s[32:33], s[0:1], 64
    s_load_dwordx2 s[34:35], s[0:1], 0
    s_load_dwordx2 s[62:63], s[0:1], 88
    v_lshrrev_b32 v16, 6, v0
    v_and_b32 v{vL}, 63, v0
    v_readfirstlane_b32 s{sW}, v16
    {idmap()}
    s_lshl_b32 s{sM}, s{sW}, 10
    s_mul_i32 s{sMK}, s{sW}, 1040
    s_mul_i32 s{sMV}, s{sW}, 1056
    s_and_b32 s{sK0}, s{sQT}, {int(os.environ.get('KST', '0'))}
    s_lshl_b32 s{sK0}, s{sK0}, 15
    s_mov_b32 s{sKo}, s{sK0}
    s_mov_b32 s{sVo}, s{sK0}
    s_mov_b32 s{sFB}, 0
    v_lshlrev_b32 v{vDKV}, 4, v0
    v_lshlrev_b32 v17, 4, v{vL}""")
    P(f"""v_bfe_u32 v18, v{vL}, 1, 2
    v_lshrrev_b32 v19, 4, v{vL}
    v_xor_b32 v18, v18, v19
    v_and_b32 v20, 1, v{vL}
    v_lshlrev_b32 v20, 4, v20
    v_lshl_add_u32 v18, v18, 5, v20
    v_lshrrev_b32 v20, 3, v0
    v_lshl_add_u32 v{vDQ}, v20, 13, v18
    v_mul_u32_u24 v20, 1152, v20
    v_add_u32 v{vDO}, v20, v18
    s_lshl_b32 s6, s{sKV}, 9
    s_lshl_b32 s7, s{sKV}, 19
    s_mul_i32 s38, s{sKV}, 294912
    s_waitcnt lgkmcnt(0)""")
    P.stamp('t_karg')
    srd(P, WS, 36, 0x10000000)
    P(f"s_add_u32 m0, s{sM}, {MODL}\ns_mov_b32 s{sT}, {MODF}\nbuffer_load_dwordx4 v{vDKV}, {R('s',WS)}, s{sT} offen lds", 'mod')
    P(f"s_add_u32 m0, s{sM}, {MODL + 4096}\ns_mov_b32 s{sT}, {MODF + 4096}\nbuffer_load_dwordx4 v{vDKV}, {R('s',WS)}, s{sT} offen lds", 'mod')
    srd(P, WQ, 68, 575*8192 + 512, 's6'); srd(P, KS, 64, 524288, 's7'); srd(P, VS, 66, 524288, 's7'); srd(P, WO, 70, 294912, 's38')
    P(f"s_add_u32 s52, s36, {FLAGS}\ns_addc_u32 s53, s37, 0")
    P(f"s_lshl_b32 s6, s{sQT}, 3\ns_lshl_b32 s7, s{sW}, 1\ns_add_u32 s6, s6, s7\ns_mul_i32 s7, s6, 18432")
    def xload(ks, cb):
        P(f"s_add_u32 s{sT}, s7, {XH + cb*18432 + ks*1024}\nbuffer_load_dwordx4 {R('v', H + 72*cb + 4*ks)}, v17, {R('s',WS)}, s{sT} offen")
    for ks in range(9):
        for cb in range(2): xload(ks, cb)
    P.stamp('t_x0!')
    emit_left(P, qunit(0))
    for ks in range(9, 18):
        for cb in range(2): xload(ks, cb)
    P.stamp('t_x1!')
    P(f"""s_mul_i32 s38, s{sKV}, {NB}
    s_add_u32 s{sSt0}, s38, s7
    s_add_u32 s{sSt0}, s{sSt0}, {PART[0]}
    s_add_u32 s{sSt1}, s{sSt0}, 18432""")
    P(f"""v_and_b32 v20, 15, v{vL}
    v_lshlrev_b32 v{vBP}, 2, v20
    v_lshrrev_b32 v21, 3, v20
    v_mul_u32_u24 v21, 9216, v21
    v_and_b32 v22, 7, v{vL}
    v_lshl_add_u32 v22, v19, 3, v22
    v_lshl_add_u32 v{vST}, v22, 4, v21""")
    def pi(d, x):
        P(f"""v_lshrrev_b32 v23, 2, v{x}
        v_lshrrev_b32 v24, 3, v{x}
        v_xor_b32 v23, v23, v24
        v_and_b32 v23, 1, v23
        v_and_b32 v24, 3, v{x}
        v_lshl_add_u32 v23, v24, 1, v23
        v_and_b32 v24, 8, v{x}
        v_add_u32 v{d}, v23, v24""")
    pi(25, 20)
    P(f"""v_mul_u32_u24 v25, 1040, v25
    v_and_b32 v23, 1, v19
    v_lshrrev_b32 v24, 1, v19
    v_lshl_add_u32 v23, v23, 1, v24
    v_lshl_add_u32 v{vKA}, v23, 4, v25
    v_add_u32 v{vKB}, {2*SLOT}, v{vKA}
    v_lshrrev_b32 v26, 2, v{vL}""")
    pi(25, 26)
    P(f"""v_mul_u32_u24 v25, 1056, v25
    v_and_b32 v27, 3, v{vL}
    v_lshl_add_u32 v{vVA}, v27, 3, v25
    v_add_u32 v{vVB}, {2*SLOT}, v{vVA}""")
    P(f"""v_lshlrev_b32 v25, 7, v26
    v_lshl_add_u32 v25, v27, 3, v25
    v_bfe_u32 v24, v{vL}, 3, 2""")
    for s in range(4): P(f"v_xor_b32 v23, {s}, v24\nv_lshl_add_u32 v{vW+s}, v23, 5, v25")
    P(f"""v_and_b32 v23, 1, v{vL}
    v_mov_b32 v24, 0x44444444
    v_mov_b32 v25, 0xeeeeeeee
    v_cmp_eq_u32 vcc, 1, v23
    v_cndmask_b32 v{vIDX}, v24, v25, vcc
    v_mov_b32 v24, 0
    v_mov_b32 v25, 0x3f803f80
    v_cmp_gt_u32 vcc, 2, v20
    v_cndmask_b32 v23, v24, v25, vcc""")
    for i in range(4): P(f"v_accvgpr_write_b32 a{ONES+i}, v23")
    def zero():
        for i in list(range(O, O+128)) + list(range(L, L+16)): P(f"v_accvgpr_write_b32 a{i}, 0")
    zero()
    P.stamp('t_valu!')
    emit_left(P, qunit(1))
    P.stamp('t_q1!')
    P(f"""v_lshlrev_b32 v23, 4, v19
    v_add_u32 v23, {MODL}, v23
    WAITVM mod
    s_barrier""")
    P.stamp('s_modbar!')
    def mread(ks):
        b = Q + 16*(ks % 3)
        for i, off in enumerate((2304, 2368, 0, 64)): P(f"ds_read_b128 {R('v', b+4*i)}, v23 offset:{off + 128*ks}")
    mread(0); mread(1)
    for ks in range(18):
        if ks + 2 < 18: mread(ks + 2)
        if ks == 9:
            P.stamp('t_mod9!')
            emit_left(P, qunit(2))
            P(f"v_lshlrev_b32 v24, 7, v0")
            if os.environ.get('KVPF', '0') == '1': P(f"buffer_load_dword a255, v24, {R('s', KS)}, s{sK0} offen\nbuffer_load_dword a255, v24, {R('s', VS)}, s{sK0} offen", 'pf')
            P(f"""s_getpc_b64 s[72:73]
            K1_pc:""", 'keep')
            P(f"""s_bfe_u32 s38, s2, 0x20003
            s_lshl_b32 s38, s38, 15
            v_add_u32 v24, s38, v24
            v_min_u32 v24, K1_last-K1_pc-4, v24
            v_mov_b32 v25, s73
            v_add_co_u32 v24, vcc, s72, v24
            v_addc_co_u32 v25, vcc, 0, v25, vcc""")
            P("global_load_dword a255, v[24:25], off", 'pf')
        b = Q + 16*(ks % 3)
        for cb in range(2):
            for i in range(4):
                x = H + 72*cb + 4*ks + i; t = TMP + 2*i + 8*cb
                P(f"v_fma_mix_f32 v{t}, v{x}, v{b+2*i}, v{b+8+2*i} op_sel_hi:[1,0,0]")
                P(f"v_fma_mix_f32 v{t+1}, v{x}, v{b+2*i+1}, v{b+8+2*i+1} op_sel:[1,0,0] op_sel_hi:[1,0,0]")
            for i in range(4):
                x = H + 72*cb + 4*ks + i; t = TMP + 2*i + 8*cb
                P(f"v_cvt_pk_bf16_f32 v{x}, v{t}, v{t+1}")
    QB = (128, 164)
    P.stamp('s_mod!')
    P("WAITVM q0\ns_barrier")
    P.stamp('a_q0!')
    for ks in range(9):
        for x in wread(QB[0], 0, ks): P(x)
    Z = Sched(); blk = {}
    for u in range(8):
        for s in range(4):
            b = 4*u + s; g0 = len(Z.G); blk[b] = g0
            for cb in range(2):
                for ks in range(9):
                    Z.m(mf(R('v', ACC + 8*s + 4*cb), R('a', QB[b & 1] + 4*ks), R('v', H + 72*cb + 4*(ks + 9*(u & 1))), '0' if (u & 1) == 0 and ks == 0 else None))
            if s == 3:
                Z.sc(g0, f"WAITVM {'q%d' % (u+1) if u < 7 else 'k0'}"); Z.sc(g0, "s_barrier")
            if b < 31:
                for ks in range(9):
                    for x in wread(QB[(b+1) & 1], (s+1) & 3, ks): Z.put(g0 + 2*ks, 'd', x)
            else:
                rd = kread(0, 0) + kread(1, 0)
                for i, x in enumerate(rd): Z.put(g0 + 2*(i//2), 'd', x)
            if u < 7: Z.put(g0 + 1, 'v', f"v_add_u32 v{vW+s}, {hex((SLOT if u % 4 < 3 else -3*SLOT) & 0xffffffff)}, v{vW+s}")
    def qpost(u, s):
        gq = u >> 1; it = []
        for cb in range(2):
            q = Q + 16*((gq >> 1)*2 + cb) + 4*(2*(gq & 1) + (s >> 1)); a = ACC + 8*s + 4*cb
            it += [V(f"v_cvt_pk_bf16_f32 v{q + 2*(s & 1) + i}, v{a+2*i}, v{a+2*i+1}") for i in range(2)]
        sw = []
        if s & 1:
            for cb in range(2):
                q = Q + 16*((gq >> 1)*2 + cb) + 4*(2*(gq & 1) + (s >> 1))
                sw += [V(f"v_permlane16_swap_b32 v{q+i}, v{q+2+i}") for i in range(2)]
        return it, sw
    for u in range(1, 8, 2):
        for s in range(4):
            b = 4*u + s
            if b < 31:
                it, sw = qpost(u, s)
                g, left = Z.fill(it, blk[b+1] + 3, blk[b+1] + 18); assert not left
                g, left = Z.fill(sw, g + 1, blk[b+1] + 18); assert not left
    for u in range(1, 8):
        for x in P.stamptext(False, f'u_q{u}'): Z.sc(blk[4*u] + 1, x)
    for u in range(8):
        d = qunit(u + 3) if u < 5 else (kvt('k', 0, 'k0') if u == 5 else kvt('k', 1, 'k1') if u == 6 else kvt('v', 2, 'v0'))
        g, left = Z.fill(d, blk[4*u + 3] + 1, blk.get(4*u + 7, len(Z.G)), step=3 if u < 7 else 1); assert not left, u
        if u in (5, 6):
            for x in adv(sKo): Z.sc(g, x)
    P.gaps(Z.G)
    for x in adv(sVo): P(x)
    it, sw = qpost(7, 3); emit_left(P, it + sw)
    pfsetup(P)
    P.stamp('a_qproj')
    T = PB[1]
    for kb in range(2):
        for c in range(4):
            for ds in range(4): P(qk(kb, c, ds, T + 16*kb + 4*c, '0'))
    for c in range(4):
        a = T + 4*c; t = TMP + c
        P(f"v_max3_f32 v{t}, v{a}, v{a+1}, v{a+2}\nv_max3_f32 v{t}, v{t}, v{a+3}, v{a+16}\nv_max3_f32 v{t}, v{t}, v{a+17}, v{a+18}\nv_max_f32 v{t}, v{t}, v{a+19}")
    for c in range(4): xmax(P, TMP + c, TMP + 4 + c)
    for c in range(4):
        for i in range(4): P(f"v_sub_f32 v{MN+4*c+i}, 0xc1c00000, v{TMP+c}")
    P("s_nop 1\nK1_stageP:")
    Z = Sched(); wins = []
    for g in range(8):
        g0 = len(Z.G)
        for c in range(4):
            w0 = len(Z.G); n = 4*g + c
            for ds in range(4): Z.m(qk(g, c, ds, S + 4*c, R('v', MN + 4*c)))
            if n >= 2:
                pc = (n - 2) & 3
                for i, e in enumerate(exps(pc)): Z.put(w0 + i, 'v', e, 2)
            if n >= 3:
                for i, x in enumerate(cvts((n-3) >> 2, (n-3) & 3, PB[0])): Z.G[w0 + i]['v'].insert(0, x)
        if g == 7:
            rd = kread(0, 1) + vread(0, 2); Z.sc(g0, "s_waitcnt vmcnt(0)"); Z.sc(g0, "s_barrier")
        else: rd = kread(g + 1, 0) if g else []
        for i, x in enumerate(rd): Z.put(g0 + i, 'd', x)
        if g < 7: Z.sc(len(Z.G) - 1, "s_waitcnt lgkmcnt(0)")
    P.gaps(Z.G)
    for x in cvts(7, 1, PB[0]) + exps(2) + ["s_waitcnt lgkmcnt(0)"] + cvts(7, 2, PB[0]): P(x)
    P.stamp('s_P')
    P(f"s_mov_b32 s{sCnt}, 7\n.p2align 5\nK1_loop:")
    stage(P, 0, 1, 2, 3, 0, kvt('k', 3, 'x') + kvt('v', 0, 'x') + [('d', (f"buffer_load_dword a255, v{vPF}, {R('s', PF)}, s{sPo} offen", 'pf'), 2, [])], "s_waitcnt vmcnt(1)", adv(sKo) + adv(sVo) + [f"s_add_u32 s{sPo}, s{sPo}, s{sPa}"])
    stage(P, 1, 3, 0, 1, 2, kvt('k', 1, 'x') + kvt('v', 2, 'x'), "s_waitcnt vmcnt(0)", adv(sKo) + adv(sVo) + [f"s_sub_u32 s{sCnt}, s{sCnt}, 1", f"s_cmp_lg_u32 s{sCnt}, 0"])
    P("s_cbranch_scc1 K1_loop")
    P.stamp('a_loop')
    stage(P, 0, 1, 2, None, 0, kvt('v', 0, 'v15') + ounit(0), "WAITVM v15", [])
    P.stamp('s_last')
    Z = Sched(); pin = PB[1]; OB = PB[0]; gs = []
    OBUF = (KF, 0)
    for g in range(8):
        g0 = len(Z.G); gs.append(g0)
        for c in range(4):
            for j in range(4): Z.m(pv(g, c, j, pin))
        o = 0
        if g == 0:
            for i, e in enumerate(exps(3)): Z.put(i, 'v', e, 2)
            for x in cvts(7, 3, pin): Z.put(4, 'v', x)
            for n in range(8): Z.m(smf(n & 3, n >> 2, pin))
            o = 5
        if g < 7: rd = vread(g + 1, 0)
        else:
            rd = [f"ds_read_b128 {R('v', MN+8)}, v{MN+12}"] + [x for ks in range(8) for x in wread(OBUF[0], 0, ks)]
            Z.sc(g0, "WAITVM o0"); Z.sc(g0, "s_barrier")
        for i, x in enumerate(rd): Z.put(g0 + o + i//2, 'd', x)
        Z.sc(len(Z.G) - 1, "s_waitcnt lgkmcnt(0)")
    RR = MN
    it = []
    for c in range(4): it += [V(f"v_accvgpr_read_b32 v{RR+c}, a{L+4*c}"), V(f"v_accvgpr_read_b32 v{RR+4+c}, a{L+4*c+1}")]
    for c in range(4): it += [V(f"v_add_f32 v{RR+c}, v{RR+c}, v{RR+4+c}")]
    g, left = Z.fill(it, gs[1] + 4); assert not left
    g, left = Z.fill([('d', f"ds_bpermute_b32 v{RR+4+c}, v{vBP}, v{RR+c}", 1, []) for c in range(4)], g + 1); assert not left and g < gs[2], (g, gs)
    it = [V(f"v_rcp_f32 v{RR+c}, v{RR+4+c}") for c in range(4)]
    it += [V(f"v_add_f32 v{RR+4}, v{RR+4}, v{RR+5}"), V(f"v_add_f32 v{RR+6}, v{RR+6}, v{RR+7}"), V(f"v_add_f32 v{RR+4}, v{RR+4}, v{RR+6}"),
           V(f"v_cmp_ngt_f32 vcc, 0x5f800000, v{RR+4}"), V(f"v_mov_b32 v{MN+12}, {FLAG}"), V(f"v_lshl_add_u32 v{RR+5}, s{sW}, 2, v{MN+12}")]
    g, left = Z.fill(it, gs[2]); assert not left
    Z.sc(g + 2, "s_cmp_lg_u64 vcc, 0"); Z.sc(g + 2, "s_cselect_b32 s38, 1, 0")
    g, left = Z.fill([V(f"v_mov_b32 v{RR+4}, s38")], g + 3); assert not left
    g, left = Z.fill([('d', f"ds_write_b32 v{RR+5}, v{RR+4}", 1, [])], g + 1); assert not left and g < gs[6]
    gn = g
    g, left = Z.fill(ounit(1) + ounit(2), 9, gs[7], step=4); assert not left
    it = []; n = 0
    for db in range(8):
        for c in (0, 2, 1, 3):
            t = TMP + 4*(n % 8); n += 1
            e = gs[db+1] + 2 if db < 7 else 10**6
            it += [V(f"v_accvgpr_read_b32 v{t+i}, a{O+16*db+4*c+i}", e) for i in range(4)]
            it += [V(f"v_mul_f32 v{t+i}, v{t+i}, v{RR+c}") for i in range(4)]
            ob = OB + 32*(c & 1) + 4*((c >> 1)*4 + (db >> 1)) + 2*(db & 1)
            it += [V(f"v_cvt_pk_bf16_f32 v{ob+i}, v{t+2*i}, v{t+2*i+1}") for i in range(2)]
    g, left = Z.fill(it, gn)
    P.stats['normleft'] = len(left)
    P.gaps(Z.G)
    P(f"""v_or_b32 v{MN+8}, v{MN+8}, v{MN+9}
    v_or3_b32 v{MN+8}, v{MN+8}, v{MN+10}, v{MN+11}
    s_nop 0
    v_readfirstlane_b32 s38, v{MN+8}
    s_nop 1
    s_cmp_gt_u32 s38, {'s%d' % sFB if not os.environ.get('ABL') else 5}
    s_cbranch_scc1 K1_fb""")
    k3.setup_s(P); xch.setup_s(P)
    emit_left(P, left)
    P.stamp('a_F')
    Z = Sched(); blk = {}; ST = PB[1]
    for u in range(9):
        for s in range(4):
            b = 4*u + s; g0 = len(Z.G); blk[b] = g0
            for cb in range(2):
                for ks in range(8):
                    Z.m(mf(R('v', ACC + 8*s + 4*cb), R('a', OBUF[b & 1] + 4*ks), R('v', OB + 32*cb + 4*ks), '0' if ks == 0 else None))
            if s == 3 and u < 8:
                Z.sc(g0, f"WAITVM o{u+1}"); Z.sc(g0, "s_barrier")
            if b < 35:
                for ks in range(8):
                    for x in wread(OBUF[(b+1) & 1], (s+1) & 3, ks): Z.put(g0 + 2*ks, 'd', x)
            if u < 8: Z.put(g0 + 1, 'v', f"v_add_u32 v{vW+s}, {hex(((OSL[(u+1) % 4] - OSL[u % 4])*SLOT) & 0xffffffff)}, v{vW+s}")
    def opost(u, s):
        it = []; st = []
        for cb in range(2):
            q = ST + 16*(u & 1) + 8*(s >> 1) + 4*cb; a = ACC + 8*s + 4*cb
            it += [V(f"v_cvt_pk_bf16_f32 v{q + 2*(s & 1) + i}, v{a+2*i}, v{a+2*i+1}") for i in range(2)]
            if s & 1:
                sb = sSt1 if cb else sSt0
                st.append(('d', (f"buffer_store_dwordx4 {R('v', q)}, v{vST}, {R('s',WS)}, s51 offen sc1", f"st{u}"), 2, [f"s_add_u32 s51, s{sb}, {u*1024 + (s >> 1)*512}"]))
        return it, st
    for b in range(35):
        it, st = opost(b >> 2, b & 3)
        g, left = Z.fill(it, blk[b+1] + 3, blk[b+1] + 16); assert not left
        g, left = Z.fill(st, g + 1, blk[b+1] + 16); assert not left
    for u in range(6):
        g, left = Z.fill(ounit(u + 3), blk[4*u+3] + 1, blk[4*u+7], step=3); assert not left
    g, left = Z.fill(xch.pre1(), blk[0] + 2, blk[27]); assert not left
    Z.sc(blk[31] + 1, "WAITVM st5")
    g, left = Z.fill([xch.flag(0)], blk[31] + 1, blk[32]); assert not left
    g, left = Z.fill([x for u in range(3) for x in k3.dmas(u)], blk[27] + 1, blk[31], step=2); assert not left
    g, left = Z.fill([x for u in range(3, 6) for x in k3.dmas(u)], blk[31] + 1, step=2); assert not left
    P.gaps(Z.G)
    it, st = opost(8, 3); emit_left(P, it + st)
    P.stamp('a_oproj')
    xch.exch1(P)
    k3.ffn(P)
    xch.exch2(P)
    P.stampout(1, WS, sW)
    P("K1_end:\ns_endpgm")
    P("K1_fb:", 'reset')
    P(f"""s_waitcnt vmcnt(0) lgkmcnt(0)
    s_mov_b32 s{sFB}, 1
    s_mov_b32 s{sKo}, 0""")
    for c in range(4): P(f"v_mov_b32 v{TMP+c}, 0xff800000")
    P("K1_fbt:\ns_barrier")
    emit_left(P, kvt('k', 0, 'x'))
    P(f"s_waitcnt vmcnt(0)\ns_barrier\ns_mov_b32 s{sCnt}, 0\nK1_fbk:")
    P(f"""s_lshr_b32 s38, s{sCnt}, 2
    s_mul_i32 s38, s38, 16640
    s_and_b32 s39, s{sCnt}, 3
    s_lshl_b32 s39, s39, 8
    s_add_u32 s38, s38, s39
    v_add_u32 v{TMP+8}, s38, v{vKA}""")
    for ds in range(4): P(f"ds_read_b128 {R('a', KF + 4*ds)}, v{TMP+8} offset:{64*ds}")
    for c in range(4):
        for ds in range(4): P(qk(0, c, ds, S + 4*c, '0'))
    for c in range(4):
        a = S + 4*c
        P(f"v_max3_f32 v{TMP+c}, v{TMP+c}, v{a}, v{a+1}\nv_max3_f32 v{TMP+c}, v{TMP+c}, v{a+2}, v{a+3}")
    P(f"""s_add_u32 s{sCnt}, s{sCnt}, 1
    s_cmp_lt_u32 s{sCnt}, 8
    s_cbranch_scc1 K1_fbk
    s_add_u32 s{sKo}, s{sKo}, 32768
    s_cmp_lt_u32 s{sKo}, 524288
    s_cbranch_scc1 K1_fbt
    s_barrier
    s_mov_b32 s{sKo}, s{sK0}
    s_mov_b32 s{sVo}, s{sK0}""")
    emit_left(P, kvt('k', 0, 'x'))
    for x in adv(sKo): P(x)
    emit_left(P, kvt('k', 1, 'x'))
    for x in adv(sKo): P(x)
    emit_left(P, kvt('v', 2, 'x'))
    for x in adv(sVo): P(x)
    for c in range(4): xmax(P, TMP + c, TMP + 4 + c)
    for c in range(4):
        for i in range(4): P(f"v_sub_f32 v{MN+4*c+i}, 0, v{TMP+c}")
    zero()
    P("s_waitcnt vmcnt(0)\ns_barrier")
    for x in kread(0, 0) + kread(1, 0): P(x)
    P("s_waitcnt lgkmcnt(0)\ns_branch K1_stageP\nK1_last:")
    return P
```

```python
from fw import *
from small import H2, PART, NB, C0P
import xch
US = 12288; RB = 36864; ACTS = 110592
vL, vDG, vDD, vDH, vAH, vAW, vAR, vL16, vST = 1, 2, 3, 4, 5, 6, 7, 8, 9
vW = 10
vWH = 14
AB = (16, 28); TMP = 40; GA = (64, 96); UA = 128; HV = 160; PRE = 192
sW, sFC, sRT = 3, 4, 5
WG, WU, WD, WS = 8, 12, 16, 24
sM, sF0, sFh, sD0, sDh, sT, sC0, sSt, sH = 40, 41, 42, 43, 44, 45, 47, 50, 54
def hreg(cb, ks):
    i = ks*4 + cb
    return R('a', 4*i) if i < 64 else R('v', HV + 4*(i - 64))
def breg(cb, kk):
    i = kk*4 + cb
    return R('v', PRE + 4*i) if i < 12 else R('a', 4*(i - 12))
UN = []
for j in range(4):
    for m in 'gu':
        for i in range(6): UN.append((m, j, i))
for m in 'GU':
    for i in range(3): UN.append((m, 4, i))
for j in range(9):
    for i in range(3): UN.append(('d', j, i))
def dmas(u):
    m, j, i = UN[u]; it = []
    for x in range(3):
        if m in 'gu': v, r, sc = vDG, (WG if m == 'g' else WU), f"s_add_u32 s{sT}, s{sF0}, {j*128 + (3*i + x)*32*9216}"
        elif m in 'GU': v, r, sc = vDH, (WG if m == 'G' else WU), f"s_add_u32 s{sT}, s{sFh}, {(3*i + x)*64*9216}"
        else:
            kk = 3*i + x; v, r = vDD, WD
            sc = f"s_add_u32 s{sT}, s{sD0}, {j*128 + kk*32*1152}" if kk < 8 else f"s_add_u32 s{sT}, s{sDh}, {j*128}"
        it.append(('d', (f"buffer_load_dwordx4 v{v}, {R('s', r)}, s{sT} offen lds", f"u{u}"), 2, [f"s_add_u32 m0, s{sM}, {RB + (u % 6)*US + x*4096}", sc]))
    return it
def reads(u, b):
    m, j, i = UN[u]; sl = u % 6; buf = AB[b]; o = (sl % 3)*US
    if m in 'GU': return [f"ds_read_b64_tr_b16 {R('v', buf + 4*x + 2*h, 2)}, v{vWH + sl//3} offset:{o + (2*(3*b + x) + h)*1024}" for x in range(3) for h in range(2)]
    return [f"ds_read_b64_tr_b16 {R('v', buf + 4*x + 2*h, 2)}, v{vW + 2*b + sl//3} offset:{o + (4*x + 2*h)*1024}" for x in range(3) for h in range(2)]
def acc(u, b, cb):
    m, j, i = UN[u]
    base = UA if m == 'u' else GA[0] + 16 if m == 'U' else GA[(j + (1 if m == 'd' else 0)) & 1]
    return base + (16*b if m not in 'GU' else 0) + 4*cb

def setup_s(P):
    P(f"""s_and_b32 s6, s{sFC}, 1
    s_mul_i32 s7, s{sFC}, 288
    s_lshl_b32 s38, s6, 5
    s_add_u32 s{sF0}, s7, s38
    s_lshl_b32 s38, s6, 8
    s_sub_u32 s{sFh}, s7, s38
    s_add_u32 s{sFh}, s{sFh}, 256
    s_mul_i32 s{sD0}, s{sF0}, 1152
    s_mul_i32 s{sDh}, s{sFh}, 1152
    s_lshl_b32 s{sF0}, s{sF0}, 1
    s_lshl_b32 s{sFh}, s{sFh}, 1
    s_mov_b32 s{sC0}, {hex(C0P)}
    s_and_b32 s38, s{sW}, 1
    s_lshr_b32 s39, s{sW}, 1
    s_lshl_b32 s6, s{sRT}, 3
    s_lshl_b32 s7, s38, 2
    s_add_u32 s6, s6, s7
    s_mul_i32 s{sH}, s6, 18432
    s_mul_i32 s6, s{sFC}, {NB}
    s_add_u32 s{sSt}, s6, s{sH}
    s_lshl_b32 s6, s39, 9
    s_add_u32 s{sSt}, s{sSt}, s6
    s_add_u32 s{sSt}, s{sSt}, {PART[1]}""")
    srd(P, WG, 28, 576*9216); srd(P, WU, 30, 576*9216); srd(P, WD, 32, 4608*1152)
def setup_v0():
    return [f"v_lshrrev_b32 v{vDG}, 3, v0", f"v_mul_u32_u24 v{vDG}, 8064, v{vDG}", f"v_add_u32 v{vDG}, v{vDG}, v{vDD}",
            f"v_lshrrev_b32 v{vDH}, 2, v0", f"v_mul_u32_u24 v{vDH}, 9216, v{vDH}", f"v_and_b32 v{vAH}, 48, v{vDD}", f"v_add_u32 v{vDH}, v{vDH}, v{vAH}"]
def setup_v1(P):
    P(f"""s_and_b32 s38, s{sW}, 1
    s_lshr_b32 s39, s{sW}, 1
    v_lshlrev_b32 v{vL16}, 4, v{vL}
    v_lshrrev_b32 v19, 4, v{vL}
    s_mul_i32 s6, s38, {ACTS}
    v_add_u32 v{vAR}, s6, v{vL16}
    s_lshl_b32 s6, s39, 12
    v_add_u32 v{vAW}, s6, v{vAR}
    v_lshrrev_b32 v26, 2, v{vL}
    v_and_b32 v27, 3, v{vL}
    v_lshlrev_b32 v25, 7, v26
    v_lshl_add_u32 v25, v27, 3, v25
    v_add_u32 v25, {RB}, v25
    v_bfe_u32 v24, v{vL}, 3, 2
    s_lshl_b32 s6, s39, 1""")
    for b in range(2):
        P(f"v_xor_b32 v23, s6, v24\nv_xor_b32 v23, {b}, v23\nv_lshl_add_u32 v{vW+2*b}, v23, 5, v25\nv_add_u32 v{vW+2*b+1}, {3*US}, v{vW+2*b}")
    P(f"""v_lshlrev_b32 v25, 6, v26
    v_lshl_add_u32 v25, v27, 3, v25
    v_add_u32 v25, {RB}, v25
    v_and_b32 v23, 1, v19
    v_xor_b32 v23, s39, v23
    v_lshl_add_u32 v{vWH}, v23, 5, v25
    v_add_u32 v{vWH+1}, {3*US}, v{vWH}
    s_lshl_b32 s6, s39, 3
    v_add_u32 v{vAH}, s6, v{vAR}""")
def ffn(P):
    def hload(ks):
        it = []
        for cb in range(4):
            it.append(('d', f"buffer_load_dwordx4 {hreg(cb, ks)}, v{vL16}, {R('s',WS)}, s{sT} offen sc1", 2, [f"s_add_u32 s{sT}, s{sH}, {H2 + cb*18432 + ks*1024}"]))
        return it
    for ks in range(9): emit_left(P, hload(ks))
    for x in reads(0, 0): P(x)
    NU = len(UN)
    def build(Z, u0, u1, st):
        for u in range(u0, u1):
            m, j, i = UN[u]
            for b in range(2):
                g0 = len(Z.G); st[(u, b)] = g0
                for cb in range(4):
                    for x in range(3):
                        if m == 'd': B = breg(cb, 3*i + x); first = i == 0 and x == 0
                        elif m in 'GU': B = hreg(cb, 6*i + 3*b + x); first = i == 0 and b == 0 and x == 0
                        else: B = hreg(cb, 3*i + x); first = i == 0 and x == 0
                        Z.m(mf(R('v', acc(u, b, cb)), R('v', AB[b] + 4*x), B, '0' if first else None))
                rd = reads(u, 1) if b == 0 else (reads(u + 1, 0) if u + 1 < NU else [])
                for n, x in enumerate(rd): Z.put(g0 + n, 'd', x)
                if b == 0 and u + 1 < NU:
                    Z.sc(g0 + 11, "s_waitcnt lgkmcnt(0)"); Z.sc(g0 + 11, f"WAITVM u{u+1}"); Z.sc(g0 + 11, "s_barrier")
        for u in range(u0, u1):
            if u + 6 < NU:
                if os.environ.get('SPREAD') and u + 1 < u1:
                    for x, pos in zip(dmas(u + 6), (st[(u, 1)] + 6, st[(u, 1)] + 11, st[(u + 1, 0)] + 7)):
                        g, left = Z.fill([x], pos, pos + 1); assert not left
                else:
                    g, left = Z.fill(dmas(u + 6), st[(u, 1)] + 6, st[(u, 1)] + 12, step=2); assert not left
    Z = Sched(); st = {}
    build(Z, 0, 54, st)
    hl = [it for ks in range(9, 18) for it in hload(ks)]
    g, left = Z.fill(hl, 0, st[(3, 0)]);
    if left:
        g, left = Z.fill(left, st[(3, 0)], st[(5, 0)]); assert not left
    ops = []
    def op(t, deps, e=0, key='v', el=None, acq=False, rel=False):
        ops.append(dict(t=t, key=key, cost=2 if t.split()[0] in TRANS else 1, deps=deps, e=e, g=None, el=el, acq=acq, rel=rel, j=j)); return len(ops) - 1
    dead = {}; lastw = {}
    for j in range(5):
        ug = 12*j + (5 if j < 4 else 2); uu = 12*j + (11 if j < 4 else 5)
        nb = 2 if j < 4 else 1
        G = GA[j & 1]
        eg = st[(ug + 1, 0)] + 3; eu = st.get((uu + 1, 0), 10**6) + 3
        for cb in range(4):
            o = TMP + 8 + 4*cb; cv = []
            for b in range(nb):
                fin = []
                for i in range(4):
                    x = G + 16*b + 4*cb + i; el = (j, x)
                    p = op(f"v_fma_f32 vT, -v{x}, v{x}, s{sC0}", [], eg, el=el, acq=True)
                    p = op(f"v_mul_f32 vT, vT, v{x}", [p], el=el)
                    p = op(f"v_exp_f32 vT, vT", [p], el=el)
                    p = op(f"v_add_f32 vT, 1.0, vT", [p], el=el)
                    p = op(f"v_rcp_f32 vT, vT", [p], el=el)
                    p = op(f"v_mul_f32 v{x}, v{x}, vT", [p], el=el, rel=True)
                    fin.append(op(f"v_mul_f32 v{x}, v{x}, v{(UA if j < 4 else GA[0] + 16)+16*b+4*cb+i}", [p], eu))
                x = G + 16*b + 4*cb
                for i in range(2): cv.append(op(f"v_cvt_pk_bf16_f32 v{o+2*b+i}, v{x+2*i}, v{x+2*i+1}", fin[2*i:2*i+2] + ([lastw[cb]] if cb in lastw else [])))
            if j < 4: lastw[cb] = op(f"ds_write_b128 v{vAW}, {R('v', o)} offset:{j*8192 + cb*1024}", cv, key='d')
            else: op(f"ds_write_b64 v{vAH}, {R('v', o, 2)} offset:{8*4096 + cb*1024}", cv, key='d')
        if j < 3: dead[j] = st[(12*(j+1) + 6, 0)]
    free = list(range(TMP, TMP + 8)) + list(range(240, 256)); held = {}
    todo = list(range(len(ops)))
    def ready(o, g):
        if o['e'] > g or (o['acq'] and not free): return False
        for d in o['deps']:
            dg = ops[d]['g']
            if dg is None or (dg == g and (o['key'] == 'd' or ops[d]['key'] == 'd')): return False
        return True
    def place(k, g):
        o = ops[k]; o['g'] = g; todo.remove(k)
        if o['acq']: held[o['el']] = free.pop(0)
        t = o['t'].replace('vT', f"v{held[o['el']]}") if o['el'] else o['t']
        if o['rel']: free.append(held.pop(o['el']))
        return t
    for g in range(len(Z.G)):
        while Z.G[g]['free'] > 0:
            cand = [k for k in todo[:400] if ops[k]['cost'] <= Z.G[g]['free'] and ready(ops[k], g)]
            if not cand: break
            tr = [k for k in cand if ops[k]['cost'] == 2]
            k = tr[0] if tr else cand[0]
            Z.put(g, ops[k]['key'], place(k, g), ops[k]['cost'])
    for j in dead:
        last = max(o['g'] if o['g'] is not None else 10**6 for o in ops if o['j'] == j)
        P.stats[f'slack{j}'] = dead[j] - last
        assert last < dead[j], (j, last, dead[j])
    left = []; g = 10**7
    while todo:
        g += 1
        cand = [k for k in todo if ready(ops[k], g)]
        for k in cand:
            if ready(ops[k], g): left.append((ops[k]['key'], place(k, g), 1, []))
    P.stats['geleft'] = len(left)
    pre = [('d', f"ds_read_b128 {breg(cb, kk)}, v{vAR} offset:{kk*4096 + cb*1024}", 1, []) for kk in range(3) for cb in range(4)]
    g, l2 = Z.fill(pre, st[(40, 0)])
    for u in (6,):
        for x in P.stamptext(False, 'a_g0'): Z.sc(st[(u, 0)] + 1, x)
    P.gaps(Z.G)
    P.stamp('a_gu')
    emit_left(P, l2)
    for kk in range(3, 6):
        for cb in range(4): P(f"ds_read_b128 {breg(cb, kk)}, v{vAR} offset:{kk*4096 + cb*1024}")
    emit_left(P, left)
    P("s_waitcnt lgkmcnt(0)\ns_barrier")
    for kk in range(6, 9):
        for cb in range(4): P(f"ds_read_b128 {breg(cb, kk)}, v{vAR} offset:{kk*4096 + cb*1024}")
    Z = Sched(); st = {}
    build(Z, 54, NU, st)
    def post(j):
        A = GA[(j + 1) & 1]; it = []
        for cb in range(4):
            o = UA + 16*(j & 1) + 4*cb
            it += [V(f"v_cvt_pk_bf16_f32 v{o+2*b+i}, v{A+16*b+4*cb+2*i}, v{A+16*b+4*cb+2*i+1}") for b in range(2) for i in range(2)]
        sto = [('d', (f"buffer_store_dwordx4 {R('v', UA + 16*(j & 1) + 4*cb)}, v{vST}, {R('s',WS)}, s51 offen sc1", f"st{j}"), 2, [f"s_add_u32 s51, s{sSt}, {cb*18432 + j*1024}"]) for cb in range(4)]
        return it, sto
    for j in range(8):
        it, sto = post(j); u = 54 + 3*(j + 1)
        g, left = Z.fill(it, st[(u, 0)] + 3, st[(u + 2, 0)]); assert not left
        g, left = Z.fill(sto, g + 1, st[(u + 2, 1)], step=3); assert not left
    g, left = Z.fill(xch.pre2(), st[(56, 0)], st[(74, 0)]); assert not left
    Z.sc(st[(79, 1)], "WAITVM st5")
    g, left = Z.fill([xch.flag(3)], st[(79, 1)], st[(80, 0)]); assert not left
    P.gaps(Z.G)
    it, sto = post(8); emit_left(P, it + sto)
    P.stamp('a_down')
```

```python
from fw import *
import struct, math
def f2u(x): return struct.unpack('<I', struct.pack('<f', x))[0]
_c0 = -2*math.log2(math.e)*math.sqrt(2/math.pi); _c1 = _c0*0.044715
kappa = (-_c1)**(1/3)
KAPPA = f2u(kappa); IK2 = f2u(1/kappa**2); C0P = f2u(_c0/kappa)
SCALE = 0x3e0293ee
MODF = 0x10000
FLAGS = 0x20000
XH   = 0x100000
H2   = 0x700000
PART = (0x1000000, 0x4000000)
NB = 2359296

def common(P):
    P(f"""v_lshrrev_b32 v1, 6, v0
    v_and_b32 v2, 63, v0
    v_readfirstlane_b32 s3, v1
    v_and_b32 v3, 7, v2
    v_bfe_u32 v4, v2, 3, 2
    v_lshrrev_b32 v5, 5, v2""")
    P("""v_lshlrev_b32 v6, 6, v1
    v_lshl_add_u32 v6, v5, 5, v6
    v_lshl_add_u32 v6, v4, 2, v6
    s_lshl_b32 s4, s2, 3
    v_add_u32 v7, s4, v3
    v_mul_u32_u24 v7, 1152, v7
    v_lshl_add_u32 v7, v6, 1, v7""")
def fragaddr(P, d):
    P(f"""s_lshr_b32 s6, s2, 1
    s_mul_i32 s6, s6, 18432
    s_and_b32 s7, s2, 1
    s_lshl_b32 s7, s7, 7
    s_add_u32 s6, s6, s7
    v_lshl_add_u32 v{d}, v1, 1, v5
    v_lshlrev_b32 v{d}, 10, v{d}
    v_lshl_add_u32 v{d}, v4, 8, v{d}
    v_lshl_add_u32 v{d}, v3, 4, v{d}
    v_add_u32 v{d}, s6, v{d}""")
def lanesum(P, s, t):
    P(f"""v_add_f32_dpp v{s}, v{s}, v{s} row_ror:8 row_mask:0xf bank_mask:0xf
    v_mov_b32 v{t}, v{s}
    v_permlane16_swap_b32 v{s}, v{t}
    v_add_f32 v{s}, v{s}, v{t}
    v_mov_b32 v{t}, v{s}
    v_permlane32_swap_b32 v{s}, v{t}
    v_add_f32 v{s}, v{s}, v{t}""")
def rowreduce(P, s, t, wa, ra, off, t4):
    lanesum(P, s, t)
    P(f"""ds_write_b32 v{wa}, v{s} offset:{off}
    s_waitcnt lgkmcnt(0)
    s_barrier
    ds_read_b128 {R('v',t4)}, v{ra} offset:{off}
    ds_read_b128 {R('v',t4+4)}, v{ra} offset:{off+16}
    ds_read_b32 v{t4+8}, v{ra} offset:{off+32}""")
    P(f"v_add_f32 v{s}, v{t4}, v{t4+1}\nv_add_f32 v{t}, v{t4+2}, v{t4+3}")
    P(f"v_add_f32 v{s}, v{s}, v{t4+4}\nv_add_f32 v{t}, v{t}, v{t4+5}\nv_add_f32 v{s}, v{s}, v{t4+6}\nv_add_f32 v{t}, v{t}, v{t4+7}")
    P(f"v_add_f32 v{s}, v{s}, v{t4+8}\nv_add_f32 v{s}, v{s}, v{t}")
def layernorm(P, x, s, t, wa, ra, t4):
    P(f"v_mul_u32_u24 v{ra}, 48, v3\nv_lshl_add_u32 v{wa}, v1, 2, v{ra}")
    P(f"v_add_f32 v{s}, v{x}, v{x+1}\nv_add_f32 v{t}, v{x+2}, v{x+3}")
    for e in range(4, 8, 2): P(f"v_add_f32 v{s}, v{s}, v{x+e}\nv_add_f32 v{t}, v{t}, v{x+e+1}")
    P(f"v_add_f32 v{s}, v{s}, v{t}")
    rowreduce(P, s, t, wa, ra, 0, t4)
    P(f"v_mul_f32 v{s}, 0x3ae38e39, v{s}")
    for e in range(8): P(f"v_sub_f32 v{x+e}, v{x+e}, v{s}")
    P(f"v_mul_f32 v{s}, v{x}, v{x}\nv_mul_f32 v{t}, v{x+1}, v{x+1}")
    for e in range(2, 8, 2): P(f"v_fmac_f32 v{s}, v{x+e}, v{x+e}\nv_fmac_f32 v{t}, v{x+e+1}, v{x+e+1}")
    P(f"v_add_f32 v{s}, v{s}, v{t}")
    rowreduce(P, s, t, wa, ra, 512, t4)
    P(f"v_mov_b32 v{t}, 0x3727c5ac\nv_fmac_f32 v{t}, 0x3ae38e39, v{s}\nv_rsq_f32 v{t}, v{t}")
    for e in range(8): P(f"v_mul_f32 v{x+e}, v{x+e}, v{t}")
def unpack(P, d, s, n):
    for i in range(n): P(f"v_lshlrev_b32 v{d+2*i}, 16, v{s+i}\nv_and_b32 v{d+2*i+1}, 0xffff0000, v{s+i}")

def k0():
    P = Prog('k0')
    P("""s_cmp_ge_u32 s2, 256
    s_cbranch_scc1 K0_end""")
    P.stamp(True); P.stamp(False, True)
    P("""s_load_dwordx2 s[8:9], s[0:1], 0
    s_load_dwordx4 s[12:15], s[0:1], 72
    s_load_dwordx2 s[10:11], s[0:1], 104
    s_load_dwordx2 s[32:33], s[0:1], 24""")
    common(P)
    fragaddr(P, 8)
    P("""s_and_b32 s40, s2, 7
    s_lshr_b32 s41, s2, 5
    s_lshl_b32 s41, s41, 3
    s_add_u32 s40, s40, s41
    s_lshl_b32 s40, s40, 2
    s_bfe_u32 s41, s2, 0x20003
    s_add_u32 s40, s40, s41
    s_lshl_b32 s43, s40, 5
    s_cmp_lt_u32 s40, 216
    s_cselect_b32 s43, s43, 0x10000000
    s_add_u32 s44, s43, 1990656
    v_lshrrev_b32 v9, 1, v0
    v_mul_u32_u24 v10, 6912, v9
    v_and_b32 v11, 1, v0
    v_lshl_add_u32 v10, v11, 4, v10
    v_lshlrev_b32 v9, 1, v9
    s_waitcnt lgkmcnt(0)""")
    srd(P, 16, 8, NB); srd(P, 20, 12, 1152); srd(P, 24, 14, 576*6912); srd(P, 28, 10, 0x10000000)
    P("""buffer_load_dwordx2 v[22:23], v7, s[16:19], 0 offen
    buffer_load_dwordx2 v[24:25], v7, s[16:19], 0 offen offset:32
    buffer_load_ushort v20, v9, s[20:23], 0 offen
    buffer_load_ushort v21, v9, s[20:23], 0 offen offset:576
    buffer_load_dwordx4 v[12:15], v10, s[24:27], s43 offen
    buffer_load_dwordx4 v[16:19], v10, s[24:27], s44 offen""")
    if os.environ.get('K0PF', '2') != '0':
        srd(P, 36, 32, 576*8192)
        P(f"""s_mul_i32 s45, s2, 18432
        v_lshlrev_b32 v64, 7, v0
        v_cmp_gt_u32 vcc, {144 if os.environ.get('K0PF') == '1' else 0}, v0
        s_and_saveexec_b64 s[46:47], vcc""")
        P("buffer_load_dword v65, v64, s[36:39], s45 offen", 'pf')
        P(f"""s_mov_b64 exec, s[46:47]
        s_getpc_b64 s[48:49]
        K0_pc:""", 'keep')
        P(f"""s_lshr_b32 s45, s2, 3
        s_lshl_b32 s45, s45, 12
        v_lshlrev_b32 v66, 6, v2
        v_add_u32 v66, s45, v66
        v_min_u32 v66, K1_last-K0_pc-4, v66
        v_mov_b32 v67, s49
        v_add_co_u32 v66, vcc, s48, v66
        v_addc_co_u32 v67, vcc, 0, v67, vcc
        v_cmp_lt_u32 vcc, 511, v0
        s_and_saveexec_b64 s[46:47], vcc""")
        P("global_load_dword v65, v[66:67], off", 'pf')
        P("s_mov_b64 exec, s[46:47]")
    P(f"""s_lshl_b32 s45, s2, 8
    s_add_u32 s45, s45, {FLAGS}
    s_cmp_eq_u32 s3, 1
    s_cselect_b32 s45, s45, 0x10000000
    v_lshlrev_b32 v26, 2, v2
    v_mov_b32 v27, 0
    buffer_store_dword v27, v26, s[28:31], s45 offen sc1""")
    unpack(P, 48, 22, 4)
    layernorm(P, 48, 27, 28, 29, 30, 56)
    for i in range(4): P(f"v_cvt_pk_f16_f32 v{56+i}, v{48+2*i}, v{49+2*i}")
    P(f"s_mov_b32 s45, {XH}\nbuffer_store_dwordx4 v[56:59], v8, s[28:31], s45 offen sc1")
    for r in (20, 21):
        P(f"""v_lshlrev_b32 v{r}, 16, v{r}
        v_mul_f32 v26, 0xbfb8aa3b, v{r}
        v_exp_f32 v26, v26
        v_add_f32 v26, 1.0, v26
        v_rcp_f32 v26, v26
        v_mul_f32 v{r}, v{r}, v26
        v_cvt_pk_bf16_f32 v{r}, v{r}, v{r}
        v_lshlrev_b32 v{r}, 16, v{r}""")
    unpack(P, 32, 12, 4); unpack(P, 40, 16, 4)
    for e in range(8): P(f"v_mul_f32 v{32+e}, v{32+e}, v20")
    for e in range(8): P(f"v_fmac_f32 v{32+e}, v{40+e}, v21")
    for e in range(4): P(f"v_permlane32_swap_b32 v{32+e}, v{36+e}")
    for e in range(4): P(f"v_add_f32 v{32+e}, v{32+e}, v{36+e}")
    for e in range(2): P(f"v_permlane16_swap_b32 v{32+e}, v{34+e}")
    for e in range(2): P(f"v_add_f32 v{32+e}, v{32+e}, v{34+e}")
    for ror in (8, 4, 2):
        for e in range(2): P(f"v_add_f32_dpp v{32+e}, v{32+e}, v{32+e} row_ror:{ror} row_mask:0xf bank_mask:0xf")
    P(f"""v_bfe_u32 v26, v2, 4, 1
    v_lshlrev_b32 v26, 3, v26
    v_lshl_add_u32 v26, v5, 4, v26
    v_lshl_add_u32 v26, v11, 5, v26
    v_lshl_add_u32 v26, v1, 6, v26
    ds_write_b64 v26, v[32:33] offset:1024
    v_and_b32 v26, 15, v2
    v_lshlrev_b32 v26, 2, v26
    s_waitcnt lgkmcnt(0)
    s_barrier
    s_cmp_lg_u32 s3, 0
    s_cbranch_scc1 K0_nog""")
    for w in range(9): P(f"ds_read_b32 v{32+w}, v26 offset:{1024+64*w}")
    P(f"""s_mul_i32 s41, s40, 1821
    s_lshr_b32 s41, s41, 16
    s_mov_b32 s42, {hex(KAPPA)}
    s_cmp_lt_u32 s41, 2
    s_cselect_b32 s42, {hex(SCALE)}, s42
    s_cmp_eq_u32 s41, 2
    s_cselect_b32 s42, 1.0, s42
    s_cmp_eq_u32 s41, 5
    s_cselect_b32 s42, {hex(IK2)}, s42
    s_cmp_eq_u32 s41, 1
    s_cselect_b32 s46, 1.0, 0
    s_cmp_eq_u32 s41, 4
    s_cselect_b32 s46, 1.0, s46
    s_lshl_b32 s43, s43, 1
    s_add_u32 s43, s43, {MODF}""")
    for w in range(1, 9): P(f"v_add_f32 v32, v32, v{32+w}")
    P(f"""v_cvt_pk_bf16_f32 v32, v32, v32
    v_lshlrev_b32 v32, 16, v32
    v_add_f32 v32, s46, v32
    v_cvt_pk_bf16_f32 v32, v32, v32
    v_lshlrev_b32 v32, 16, v32
    v_mul_f32 v32, s42, v32
    buffer_store_dword v32, v26, s[28:31], s43 offen sc1
    K0_nog:""")
    P.stampout(0, 28, 3)
    P("K0_end:\ns_endpgm")
    return P
```

```python
from fw import *
from small import MODF, FLAGS, H2, PART, NB, lanesum
import k3
vL = 1; vFL = 0
sW, sKV, sQT, WS, OUT, XS, sM = 3, 4, 5, 24, 20, 56, 40
sXo, sFl, sPL, sMo = 46, 55, 60, 61
X1L = 147456; LNS = X1L + 12288; LDS = LNS + 256
OOB = 0x40000000
def setup_s(P):
    P(f"""s_lshl_b32 s6, s{sQT}, 4
    s_add_u32 s6, s6, s{sKV}
    s_mul_i32 s6, s6, 9216
    s_lshl_b32 s7, s{sW}, 8
    s_add_u32 s{sPL}, s6, s7
    s_lshr_b32 s7, s{sW}, 1
    s_lshl_b32 s7, s7, 6
    s_and_b32 s38, s{sW}, 1
    s_lshl_b32 s38, s38, 4
    s_add_u32 s7, s7, s38
    s_add_u32 s{sXo}, s6, s7
    s_lshl_b32 s7, s7, 1
    s_add_u32 s{sMo}, s7, {MODF}
    s_lshl_b32 s6, s{sQT}, 2
    s_add_u32 s6, s6, s{sW}
    s_lshl_b32 s6, s6, 10
    s_lshl_b32 s7, s{sKV}, 2
    s_add_u32 s6, s6, s7
    s_add_u32 s{sFl}, s6, {FLAGS - 4}""")
    srd(P, XS, 34, NB)
def flag(kind, s=sFl):
    return ('d', f"buffer_store_dword v{vFL}, v{vFL}, {R('s', WS)}, s{s} offen offset:{128*kind} sc1", 2, [])
def addrs(A, pl, xo, xo4, mo, t):
    r = [f"v_lshrrev_b32 v{t}, 4, v{vL}", f"v_mul_u32_u24 v{pl}, {NB}, v{t}", f"v_and_b32 v{t+1}, 15, v{vL}", f"v_lshl_add_u32 v{pl}, v{t+1}, 4, v{pl}",
         f"v_and_b32 v{mo}, 8, v{vL}", f"v_lshlrev_b32 v{mo}, 1, v{mo}",
         f"v_and_b32 v{t}, 16, v{vL}", f"v_lshl_add_u32 v{mo}, v{t}, 2, v{mo}",
         f"v_and_b32 v{t}, 32, v{vL}", f"v_lshl_add_u32 v{mo}, v{t}, 3, v{mo}",
         f"v_and_b32 v{xo}, 7, v{vL}", f"v_mul_u32_u24 v{xo}, 1152, v{xo}", f"v_lshrrev_b32 v{t+1}, 1, v{mo}", f"v_add_u32 v{xo}, v{xo}, v{t+1}",
         f"v_lshl_add_u32 v{xo4}, v{t}, 25, v{xo}",
         f"v_and_b32 v{t}, 1, v{vL}", f"v_lshlrev_b32 v{t}, 4, v{t}", f"v_mov_b32 v{t+1}, 0x3f80", f"v_lshlrev_b32 v{t}, v{t}, v{t+1}", f"v_bfe_u32 v{t+1}, v{vL}, 1, 3"]
    for i in range(8): r += [f"v_cmp_eq_u32 vcc, {i}, v{t+1}", f"v_nop", f"v_cndmask_b32 v{A+i}, 0, v{t}, vcc"]
    return [V(x) for x in r if x != 'v_nop']
def modld(d, idx, mo):
    return [('d', f"buffer_load_dwordx4 {R('v', d + 4*t)}, v{mo}, {R('s', WS)}, s7 offen offset:{512*t}", 2, [f"s_add_u32 s7, s{sMo}, {idx*2304}"]) for t in range(5)]
A1, PL1, XO1, XO41, MO1, T1 = 48, 56, 57, 58, 59, 60
X1, GA1, CB1, SB1, D1 = 160, 172, 192, 212, 232
B1 = lambda i: 32 + 4*i if i < 24 else 64 + 4*i
def pre1():
    it = [V(x) for x in k3.setup_v0()]
    it += [V(f"v_cmp_eq_u32 vcc, 0, v{vL}"), V(f"v_mov_b32 v{vFL}, {OOB}"), V(f"v_cndmask_b32 v{vFL}, v{vFL}, 4, vcc")]
    it += addrs(A1, PL1, XO1, XO41, MO1, T1)
    it += [('d', f"buffer_load_dwordx2 {R('v', X1 + 2*t, 2)}, v{XO1 if t < 4 else XO41}, {R('s', XS)}, s{sXo} offen offset:{256*t}", 2, []) for t in range(5)]
    it += modld(GA1, 2, MO1) + modld(CB1, 4, MO1) + modld(SB1, 3, MO1)
    return it
npoll = [0]
def poll(P, n, pre):
    npoll[0] += 1; L = f"K1_poll{npoll[0]}"
    P(pre); P("s_mov_b32 s39, 0x20000")
    P(f"{L}:", 'keep')
    P(f"s_load_dwordx{n} s[64:{63+n}], s[52:53], s38 glc\ns_waitcnt lgkmcnt(0)")
    h = n // 2
    while h >= 2:
        for i in range(0, h, 2): P(f"s_and_b64 s[{64+i}:{65+i}], s[{64+i}:{65+i}], s[{64+h+i}:{65+h+i}]")
        h //= 2
    P("s_and_b32 s64, s64, s65")
    P(f"s_cbranch_scc1 {L}d", 'keep'); P("s_sub_u32 s39, s39, 1"); P(f"s_cbranch_scc0 {L}\n{L}d:", 'keep')
def ploads(P, part, j0, j1, B, pl):
    for j in range(j0, j1):
        for sq in range(4):
            P(f"s_add_u32 s7, s{sPL}, {part + sq*4*NB + j*1024}\nbuffer_load_dwordx4 {R('a', B(4*j + sq))}, v{pl}, {R('s', WS)}, s7 offen sc1")
def reduce(P, t, D, A, B):
    for j in range(2*t, min(2*t + 2, 9)):
        for sq in range(4): P(mf(R('v', D + 4*t), R('v', A + 4*(j & 1)), R('a', B(4*j + sq)), '0' if (j & 1) == 0 and sq == 0 else None))
def unpk(P, d, s, n):
    for i in range(n): P(f"v_lshlrev_b32 v{d+2*i}, 16, v{s+i}\nv_and_b32 v{d+2*i+1}, 0xffff0000, v{s+i}")
def pk(op, d, a, b, c=None): return f"v_pk_{op}_f32 v[{d}:{d+1}], v[{a}:{a+1}], v[{b}:{b+1}]" + (f", v[{c}:{c+1}]" if c is not None else '')
def exch1(P):
    line = f"s_lshr_b32 s38, s{sKV}, 2\ns_lshl2_add_u32 s38, s{sQT}, s38\ns_lshl_b32 s38, s38, 10"
    poll(P, 16, line)
    P.stamp('x_A1')
    ploads(P, PART[0], 0, 6, B1, PL1)
    P("WAITVM st8"); P.stamp('x_ack1!'); emit_left(P, [flag(1)])
    U = 64; PKD = 88; S = 100; HO, HO4, PA, LW, LR, MK = 110, 111, 112, 113, 114, 115
    k3.setup_v1(P)
    srd(P, OUT, 62, NB)
    unpk(P, U, X1, 10)
    P(f"""v_and_b32 v{S}, 7, v{vL}
    v_lshlrev_b32 v{HO}, 4, v{S}
    v_lshl_add_u32 v{LR}, v{S}, 5, 0
    v_add_u32 v{LR}, {LNS}, v{LR}
    s_lshl_b32 s6, s{sW}, 3
    v_add_u32 v{LW}, s6, v{LR}
    v_and_b32 v{S}, 8, v{vL}
    v_lshl_add_u32 v{HO}, v{S}, 5, v{HO}
    v_and_b32 v{S}, 16, v{vL}
    v_lshl_add_u32 v{HO}, v{S}, 8, v{HO}
    v_and_b32 v{S}, 32, v{vL}
    v_lshl_add_u32 v{HO}, v{S}, 6, v{HO}
    v_cmp_eq_u32 vcc, 0, v{S}
    v_and_b32 v{S}, 48, v{vL}
    v_lshl_add_u32 v{HO4}, v{S}, 25, v{HO}
    v_cndmask_b32 v{MK}, 0, 1.0, vcc
    s_add_u32 s6, s{sM}, {X1L}
    v_add_u32 v{PA}, s6, v{k3.vL16}
    s_lshl_b32 s6, s{sQT}, 3
    s_lshr_b32 s7, s{sKV}, 1
    s_add_u32 s6, s6, s7
    s_mul_i32 s48, s6, 18432
    s_and_b32 s6, s{sKV}, 1
    s_lshl_b32 s6, s6, 7
    s_add_u32 s48, s48, s6
    s_lshl_b32 s6, s{sW}, 9
    s_add_u32 s48, s48, s6
    s_lshr_b32 s6, s{sKV}, 3
    s_lshl2_add_u32 s6, s{sQT}, s6
    s_lshl_b32 s6, s6, 10
    s_and_b32 s7, s{sKV}, 7
    s_lshl2_add_u32 s6, s7, s6
    s_add_u32 s49, s6, {FLAGS - 4}
    s_cmp_eq_u32 s{sW}, 0
    s_cselect_b32 s49, s49, 0x10000000""")
    poll(P, 16, line + "\ns_add_u32 s38, s38, 128")
    ploads(P, PART[0], 6, 9, B1, PL1)
    P.stamp('a_B1!')
    def x1(t):
        for i in (0, 2): P(pk('fma', U + 4*t + i, D1 + 4*t + i, GA1 + 4*t + i, U + 4*t + i))
        for i in (0, 1): P(f"v_cvt_pk_bf16_f32 v{PKD+2*t+i}, v{U+4*t+2*i}, v{U+4*t+2*i+1}")
        unpk(P, U + 4*t, PKD + 2*t, 2)
        if t == 0: P(pk('add', S, U, U + 2))
        else: P(pk('add', S, S, U + 4*t)); P(pk('add', S, S, U + 4*t + 2))
    for t in range(3): reduce(P, t, D1, A1, B1)
    for t in range(3): x1(t)
    P(f"ds_write_b128 v{PA}, {R('v', PKD)}")
    for t in (3, 4): reduce(P, t, D1, A1, B1)
    for t in (3, 4): x1(t)
    P(f"v_add_f32 v{S}, v{S}, v{S+1}")
    lanesum(P, S, S + 1)
    P(f"""ds_write_b128 v{PA}, {R('v', PKD+4)} offset:4096
    ds_write_b64 v{PA}, {R('v', PKD+8, 2)} offset:8192
    v_mul_f32 v{S}, 0x3be38e39, v{S}
    v_mul_f32 v{S+2}, v{S}, v{MK}""")
    for i in range(0, 20, 2):
        m = S if i < 16 else S + 2
        P(f"v_pk_add_f32 v[{U+i}:{U+i+1}], v[{U+i}:{U+i+1}], v[{m}:{m+1}] op_sel_hi:[1,0] neg_lo:[0,1] neg_hi:[0,1]")
    P(pk('mul', S + 2, U, U)); P(pk('mul', S + 4, U + 2, U + 2))
    for i in range(4, 20, 2): P(pk('fma', S + 2 + (i & 2), U + i, U + i, S + 2 + (i & 2)))
    P(pk('add', S + 2, S + 2, S + 4)); P(f"v_add_f32 v{S+1}, v{S+2}, v{S+3}")
    lanesum(P, S + 1, S + 2)
    C = 120
    P(f"""ds_write_b64 v{LW}, v[{S}:{S+1}]
    s_waitcnt lgkmcnt(0)
    s_barrier
    ds_read_b128 {R('v', C)}, v{LR}
    ds_read_b128 {R('v', C+4)}, v{LR} offset:16""")
    P(pk('add', S + 2, C, C + 2)); P(pk('add', S + 4, C + 4, C + 6)); P(pk('add', S + 2, S + 2, S + 4))
    P(f"v_mul_f32 v{S+2}, 0.25, v{S+2}")
    for i in range(4): P(f"v_sub_f32 v{C+2*i}, v{C+2*i}, v{S+2}")
    P(f"v_mul_f32 v{S+4}, v{C}, v{C}")
    for i in range(1, 4): P(f"v_fmac_f32 v{S+4}, v{C+2*i}, v{C+2*i}")
    P(f"""v_fmac_f32 v{S+3}, 0x43100000, v{S+4}
    v_mov_b32 v{S+4}, 0x3727c5ac
    v_fmac_f32 v{S+4}, 0x3ae38e39, v{S+3}
    v_rsq_f32 v{S+4}, v{S+4}
    v_sub_f32 v{S}, v{S}, v{S+2}
    v_mul_f32 v{S}, v{S}, v{S+4}""")
    for t in range(5):
        for i in (0, 2):
            u = U + 4*t + i
            P(f"v_pk_fma_f32 v[{u}:{u+1}], v[{u}:{u+1}], v[{S+4}:{S+5}], v[{S}:{S+1}] op_sel_hi:[1,0,0]")
            P(pk('fma', u, u, CB1 + 4*t + i, SB1 + 4*t + i))
        for i in (0, 1): P(f"v_cvt_pk_bf16_f32 v{C+2*t+i}, v{U+4*t+2*i}, v{U+4*t+2*i+1}")
        if t & 1 or t == 4:
            b = C + 4*(t >> 1)
            P(f"""v_permlane16_swap_b32 v{b}, v{b+2}
            v_permlane16_swap_b32 v{b+1}, v{b+3}
            s_add_u32 s7, s48, {H2 + 8192*(t >> 1)}
            buffer_store_dwordx4 {R('v', b)}, v{HO if t < 4 else HO4}, {R('s', WS)}, s7 offen sc1""")
    P.stamp('a_LN')
    P("s_waitcnt vmcnt(0)\ns_barrier"); emit_left(P, [flag(2, 49)])
    poll(P, 8, f"s_and_b32 s38, s{sW}, 1\ns_lshl2_add_u32 s38, s{sQT}, s38\ns_lshl_b32 s38, s38, 10\ns_add_u32 s38, s38, 256")
    P.stamp('a_h2')
A2, PL2, XO2, XO42, MO2, PA2, T2 = 240, 248, 249, 250, 251, 252, 253
GB2, X2, D2 = 160, 180, 40
B2 = lambda i: 96 + 4*i
def pre2():
    it = [('v', f"v_add_u32 v{PA2}, s7, v{k3.vL16}", 1, [f"s_add_u32 s7, s{sM}, {X1L}"])]
    it += addrs(A2, PL2, XO2, XO42, MO2, T2)
    it += modld(GB2, 5, MO2)
    it += [('d', f"ds_read_b128 {R('v', X2)}, v{PA2}", 1, []), ('d', f"ds_read_b128 {R('v', X2+4)}, v{PA2} offset:4096", 1, []), ('d', f"ds_read_b64 {R('v', X2+8, 2)}, v{PA2} offset:8192", 1, [])]
    return it
def exch2(P):
    line = f"s_lshr_b32 s38, s{sKV}, 3\ns_and_b32 s39, s{sW}, 2\ns_add_u32 s38, s38, s39\ns_lshl2_add_u32 s38, s{sQT}, s38\ns_lshl_b32 s38, s38, 10\n"
    poll(P, 16, line + "s_add_u32 s38, s38, 384")
    P.stamp('x_A2')
    ploads(P, PART[1], 0, 6, B2, PL2)
    P("WAITVM st8"); P.stamp('x_ack2!'); emit_left(P, [flag(4)])
    U = 64
    unpk(P, U, X2, 10)
    poll(P, 16, line + "s_add_u32 s38, s38, 512")
    ploads(P, PART[1], 6, 9, B2, PL2)
    P.stamp('a_B2!')
    def fin(t):
        for i in (0, 2): P(pk('fma', U + 4*t + i, D2 + 4*t + i, GB2 + 4*t + i, U + 4*t + i))
        for i in (0, 1): P(f"v_cvt_pk_bf16_f32 v{X2+2*t+i}, v{U+4*t+2*i}, v{U+4*t+2*i+1}")
        P(f"buffer_store_dwordx2 {R('v', X2 + 2*t, 2)}, v{XO2 if t < 4 else XO42}, {R('s', OUT)}, s{sXo} offen offset:{256*t}")
    for t in range(3): reduce(P, t, D2, A2, B2)
    for t in range(3): fin(t)
    for t in (3, 4): reduce(P, t, D2, A2, B2)
    for t in (3, 4): fin(t)
```

```python
import struct, math
def f2u(x): return struct.unpack('<I', struct.pack('<f', x))[0]
_c0 = -2*math.log2(math.e)*math.sqrt(2/math.pi); _c1 = _c0*0.044715
kappa = (-_c1)**(1/3)
KAPPA = f2u(kappa); IK2 = f2u(1/kappa**2); C0P = f2u(_c0/kappa)
from fw import *
from small import H2, PART, NB
STM = os.environ.get('STM', '').replace('_', ' ')
US = 12288; ACT = 6*US; LDS3 = ACT + 73728
vL, vDG, vDH, vDD, vST, vAW, vAR, vL16 = 1, 2, 3, 4, 5, 6, 7, 8
vW = 10
vWH = 14
AB = (16, 28); TMP = 40; GA = (64, 96); UA = 128; HV = 160; PRE = 192
sW, sFC, sRT = 3, 4, 5
WG, WU, WD, WS = 8, 12, 16, 20
sM, sT, sF0, sFh, sD0, sDh, sSt, sC0 = 40, 41, 42, 43, 44, 45, 46, 47
def hreg(cb, ks):
    i = ks*4 + cb
    return R('a', 4*i) if i < 64 else R('v', HV + 4*(i - 64))
def breg(cb, kk):
    i = kk*4 + cb
    return R('v', PRE + 4*i) if i < 12 else R('a', 4*(i - 12))
UN = []
for j in range(4):
    for m in 'gu':
        for i in range(6): UN.append((m, j, i))
for m in 'GU':
    for i in range(3): UN.append((m, 4, i))
for j in range(9):
    for i in range(3): UN.append(('d', j, i))
def dmas(u):
    m, j, i = UN[u]; it = []
    for x in range(3):
        if m in 'gu': v, r, sc = vDG, (WG if m == 'g' else WU), f"s_add_u32 s{sT}, s{sF0}, {j*128 + (3*i + x)*32*9216}"
        elif m in 'GU': v, r, sc = vDH, (WG if m == 'G' else WU), f"s_add_u32 s{sT}, s{sFh}, {(3*i + x)*64*9216}"
        else:
            kk = 3*i + x; v, r = vDD, WD
            sc = f"s_add_u32 s{sT}, s{sD0}, {j*128 + kk*32*1152}" if kk < 8 else f"s_add_u32 s{sT}, s{sDh}, {j*128}"
        it.append(('d', (f"buffer_load_dwordx4 v{v}, {R('s', r)}, s{sT} offen lds", f"u{u}"), 2, [f"s_add_u32 m0, s{sM}, {(u % 6)*US + x*4096}", sc]))
    return it
def reads(u, b):
    m, j, i = UN[u]; sl = u % 6; buf = AB[b]; o = (sl % 3)*US
    if m in 'GU': return [f"ds_read_b64_tr_b16 {R('v', buf + 4*x + 2*h, 2)}, v{vWH + sl//3} offset:{o + (2*(3*b + x) + h)*1024}" for x in range(3) for h in range(2)]
    return [f"ds_read_b64_tr_b16 {R('v', buf + 4*x + 2*h, 2)}, v{vW + 2*b + sl//3} offset:{o + (4*x + 2*h)*1024}" for x in range(3) for h in range(2)]
def acc(u, b, cb):
    m, j, i = UN[u]
    base = UA if m == 'u' else GA[0] + 16 if m == 'U' else GA[(j + (1 if m == 'd' else 0)) & 1]
    return base + (16*b if m not in 'GU' else 0) + 4*cb

def k3():
    P = Prog('k3')
    P(f"""s_cmp_ge_u32 s2, 256
    s_cbranch_scc1 K3_end""")
    P.stamp(True); P.stamp()
    P(f"""s_load_dwordx4 s[28:31], s[0:1], 48
    s_load_dwordx2 s[32:33], s[0:1], 64
    s_load_dwordx2 s[36:37], s[0:1], 104
    v_lshrrev_b32 v16, 6, v0
    v_and_b32 v{vL}, 63, v0
    v_readfirstlane_b32 s{sW}, v16
    s_and_b32 s{sFC}, s2, 7
    s_lshl_b32 s{sFC}, s{sFC}, 1
    s_bfe_u32 s6, s2, 0x10003
    s_add_u32 s{sFC}, s{sFC}, s6
    s_lshr_b32 s{sRT}, s2, 4
    s_lshl_b32 s{sM}, s{sW}, 10
    s_mul_i32 s7, s{sFC}, 288
    s_lshl_b32 s38, s6, 5
    s_add_u32 s{sF0}, s7, s38
    s_lshl_b32 s38, s6, 8
    s_sub_u32 s{sFh}, s7, s38
    s_add_u32 s{sFh}, s{sFh}, 256
    s_mul_i32 s{sD0}, s{sF0}, 1152
    s_mul_i32 s{sDh}, s{sFh}, 1152
    s_lshl_b32 s{sF0}, s{sF0}, 1
    s_lshl_b32 s{sFh}, s{sFh}, 1
    s_mov_b32 s{sC0}, {hex(C0P)}
    v_lshlrev_b32 v{vL16}, 4, v{vL}
    v_bfe_u32 v18, v{vL}, 1, 2
    v_lshrrev_b32 v19, 4, v{vL}
    v_xor_b32 v18, v18, v19
    v_and_b32 v20, 1, v{vL}
    v_lshlrev_b32 v20, 4, v20
    v_lshl_add_u32 v21, v18, 5, v20
    v_lshrrev_b32 v22, 3, v0
    v_mul_u32_u24 v23, 9216, v22
    v_add_u32 v{vDG}, v23, v21
    v_mul_u32_u24 v23, 1152, v22
    v_add_u32 v{vDD}, v23, v21
    v_and_b32 v18, 1, v18
    v_lshl_add_u32 v21, v18, 5, v20
    v_lshrrev_b32 v22, 2, v0
    v_mul_u32_u24 v23, 9216, v22
    v_add_u32 v{vDH}, v23, v21
    s_and_b32 s38, s{sW}, 1
    s_lshr_b32 s39, s{sW}, 1
    s_lshl_b32 s6, s{sRT}, 3
    s_lshl_b32 s7, s38, 2
    s_add_u32 s6, s6, s7
    s_mul_i32 s7, s6, 18432
    s_waitcnt lgkmcnt(0)""")
    if os.environ.get('CPF'): codepf(P, 1, 60, 62, 54); P("v_add_co_u32 v60, vcc, 0x1c00, v60\nv_addc_co_u32 v61, vcc, 0, v61, vcc\nglobal_load_dword v62, v[60:61], off")
    srd(P, WS, 36, 0x10000000); srd(P, WG, 28, 576*9216); srd(P, WU, 30, 576*9216); srd(P, WD, 32, 4608*1152)
    def hload(ks):
        it = []
        for cb in range(4):
            it.append(('d', f"buffer_load_dwordx4 {hreg(cb, ks)}, v{vL16}, {R('s',WS)}, s{sT} offen", 2, [f"s_add_u32 s{sT}, s7, {H2 + cb*18432 + ks*1024}"]))
        return it
    for u in range(6):
        emit_left(P, dmas(u))
        if u < 3:
            for ks in range(3*u, 3*u + 3): emit_left(P, hload(ks))
    P(f"""s_mul_i32 s6, s{sFC}, {NB}
    s_add_u32 s{sSt}, s6, s7
    s_lshl_b32 s6, s39, 9
    s_add_u32 s{sSt}, s{sSt}, s6
    s_add_u32 s{sSt}, s{sSt}, {PART}
    v_and_b32 v20, 15, v{vL}
    v_lshrrev_b32 v21, 3, v20
    v_mul_u32_u24 v21, 9216, v21
    v_and_b32 v22, 7, v{vL}
    v_lshl_add_u32 v22, v19, 3, v22
    v_lshl_add_u32 v{vST}, v22, 4, v21
    s_mul_i32 s6, s38, 36864
    s_add_u32 s6, s6, {ACT}
    v_add_u32 v{vAR}, s6, v{vL16}
    s_lshl_b32 s6, s39, 12
    v_add_u32 v{vAW}, s6, v{vAR}
    v_lshrrev_b32 v26, 2, v{vL}
    v_and_b32 v27, 3, v{vL}
    v_lshlrev_b32 v25, 7, v26
    v_lshl_add_u32 v25, v27, 3, v25
    v_bfe_u32 v24, v{vL}, 3, 2
    s_lshl_b32 s6, s39, 1""")
    for b in range(2):
        P(f"v_xor_b32 v23, s6, v24\nv_xor_b32 v23, {b}, v23\nv_lshl_add_u32 v{vW+2*b}, v23, 5, v25\nv_add_u32 v{vW+2*b+1}, {3*US}, v{vW+2*b}")
    P(f"""v_lshlrev_b32 v25, 6, v26
    v_lshl_add_u32 v25, v27, 3, v25
    v_and_b32 v23, 1, v19
    v_xor_b32 v23, s39, v23
    v_lshl_add_u32 v{vWH}, v23, 5, v25
    v_add_u32 v{vWH+1}, {3*US}, v{vWH}
    s_lshl_b32 s6, s39, 3
    v_add_u32 v9, s6, v{vAR}
    WAITVM u0
    s_barrier""")
    P.stamp()
    for x in reads(0, 0): P(x)
    NU = len(UN)
    def build(Z, u0, u1, st):
        for u in range(u0, u1):
            m, j, i = UN[u]
            for b in range(2):
                g0 = len(Z.G); st[(u, b)] = g0
                for cb in range(4):
                    for x in range(3):
                        if m == 'd': B = breg(cb, 3*i + x); first = i == 0 and x == 0
                        elif m in 'GU': B = hreg(cb, 6*i + 3*b + x); first = i == 0 and b == 0 and x == 0
                        else: B = hreg(cb, 3*i + x); first = i == 0 and x == 0
                        Z.m(mf(R('v', acc(u, b, cb)), R('v', AB[b] + 4*x), B, '0' if first else None))
                rd = reads(u, 1) if b == 0 else (reads(u + 1, 0) if u + 1 < NU else [])
                for n, x in enumerate(rd): Z.put(g0 + n, 'd', x)
                if b == 0 and u + 1 < NU:
                    Z.sc(g0 + 11, "s_waitcnt lgkmcnt(0)"); Z.sc(g0 + 11, f"WAITVM u{u+1}"); Z.sc(g0 + 11, "s_barrier")
        for u in range(u0, u1):
            if u + 6 < NU:
                if os.environ.get('SPREAD') and u + 1 < u1:
                    for x, pos in zip(dmas(u + 6), (st[(u, 1)] + 6, st[(u, 1)] + 11, st[(u + 1, 0)] + 7)):
                        g, left = Z.fill([x], pos, pos + 1); assert not left
                else:
                    g, left = Z.fill(dmas(u + 6), st[(u, 1)] + 6, st[(u, 1)] + 12, step=2); assert not left
    Z = Sched(); st = {}
    build(Z, 0, 54, st)
    hl = [it for ks in range(9, 18) for it in hload(ks)]
    g, left = Z.fill(hl, 0, st[(3, 0)]);
    if left:
        g, left = Z.fill(left, st[(3, 0)], st[(5, 0)]); assert not left
    ops = []
    def op(t, deps, e=0, key='v', el=None, acq=False, rel=False):
        ops.append(dict(t=t, key=key, cost=2 if t.split()[0] in TRANS else 1, deps=deps, e=e, g=None, el=el, acq=acq, rel=rel, j=j)); return len(ops) - 1
    dead = {}; lastw = {}
    for j in range(5):
        ug = 12*j + (5 if j < 4 else 2); uu = 12*j + (11 if j < 4 else 5)
        nb = 2 if j < 4 else 1
        G = GA[j & 1]
        eg = st[(ug + 1, 0)] + 3; eu = st.get((uu + 1, 0), 10**6) + 3
        for cb in range(4):
            o = TMP + 8 + 4*cb; cv = []
            for b in range(nb):
                fin = []
                for i in range(4):
                    x = G + 16*b + 4*cb + i; el = (j, x)
                    p = op(f"v_fma_f32 vT, -v{x}, v{x}, s{sC0}", [], eg, el=el, acq=True)
                    p = op(f"v_mul_f32 vT, vT, v{x}", [p], el=el)
                    p = op(f"v_exp_f32 vT, vT", [p], el=el)
                    p = op(f"v_add_f32 vT, 1.0, vT", [p], el=el)
                    p = op(f"v_rcp_f32 vT, vT", [p], el=el)
                    p = op(f"v_mul_f32 v{x}, v{x}, vT", [p], el=el, rel=True)
                    fin.append(op(f"v_mul_f32 v{x}, v{x}, v{(UA if j < 4 else GA[0] + 16)+16*b+4*cb+i}", [p], eu))
                x = G + 16*b + 4*cb
                for i in range(2): cv.append(op(f"v_cvt_pk_bf16_f32 v{o+2*b+i}, v{x+2*i}, v{x+2*i+1}", fin[2*i:2*i+2] + ([lastw[cb]] if cb in lastw else [])))
            if j < 4: lastw[cb] = op(f"ds_write_b128 v{vAW}, {R('v', o)} offset:{j*8192 + cb*1024}", cv, key='d')
            else: op(f"ds_write_b64 v9, {R('v', o, 2)} offset:{8*4096 + cb*1024}", cv, key='d')
        if j < 3: dead[j] = st[(12*(j+1) + 6, 0)]
    free = list(range(TMP, TMP + 8)) + list(range(240, 256)); held = {}
    todo = list(range(len(ops)))
    def ready(o, g):
        if o['e'] > g or (o['acq'] and not free): return False
        for d in o['deps']:
            dg = ops[d]['g']
            if dg is None or (dg == g and (o['key'] == 'd' or ops[d]['key'] == 'd')): return False
        return True
    def place(k, g):
        o = ops[k]; o['g'] = g; todo.remove(k)
        if o['acq']: held[o['el']] = free.pop(0)
        t = o['t'].replace('vT', f"v{held[o['el']]}") if o['el'] else o['t']
        if o['rel']: free.append(held.pop(o['el']))
        return t
    for g in range(len(Z.G)):
        while Z.G[g]['free'] > 0:
            cand = [k for k in todo[:400] if ops[k]['cost'] <= Z.G[g]['free'] and ready(ops[k], g)]
            if not cand: break
            tr = [k for k in cand if ops[k]['cost'] == 2]
            k = tr[0] if tr else cand[0]
            Z.put(g, ops[k]['key'], place(k, g), ops[k]['cost'])
    for j in dead:
        last = max(o['g'] if o['g'] is not None else 10**6 for o in ops if o['j'] == j)
        P.stats[f'slack{j}'] = dead[j] - last
        assert last < dead[j], (j, last, dead[j])
    left = []; g = 10**7
    while todo:
        g += 1
        cand = [k for k in todo if ready(ops[k], g)]
        for k in cand:
            if ready(ops[k], g): left.append((ops[k]['key'], place(k, g), 1, []))
    P.stats['geleft'] = len(left)
    pre = [('d', f"ds_read_b128 {breg(cb, kk)}, v{vAR} offset:{kk*4096 + cb*1024}", 1, []) for kk in range(3) for cb in range(4)]
    g, l2 = Z.fill(pre, st[(40, 0)])
    if PROF:
        for u in (6, 12, 24, 36, 48):
            n = P.stats['stamps']; P.stats['stamps'] = n + 1
            Z.sc(st[(u, 0)] + 1, f"{'s_memrealtime' if PROF == 2 else 's_memtime'} s[{64+2*n}:{65+2*n}]")
    P.gaps(Z.G)
    P.stamp()
    emit_left(P, l2)
    for kk in range(3, 6):
        for cb in range(4): P(f"ds_read_b128 {breg(cb, kk)}, v{vAR} offset:{kk*4096 + cb*1024}")
    emit_left(P, left)
    P("s_waitcnt lgkmcnt(0)\ns_barrier")
    for kk in range(6, 9):
        for cb in range(4): P(f"ds_read_b128 {breg(cb, kk)}, v{vAR} offset:{kk*4096 + cb*1024}")
    P.stamp()
    Z = Sched(); st = {}
    build(Z, 54, NU, st)
    def post(j):
        A = GA[(j + 1) & 1]; it = []
        for cb in range(4):
            o = UA + 16*(j & 1) + 4*cb
            it += [V(f"v_cvt_pk_bf16_f32 v{o+2*b+i}, v{A+16*b+4*cb+2*i}, v{A+16*b+4*cb+2*i+1}") for b in range(2) for i in range(2)]
        sto = [('d', f"buffer_store_dwordx4 {R('v', UA + 16*(j & 1) + 4*cb)}, v{vST}, {R('s',WS)}, s48 offen{STM}", 2, [f"s_add_u32 s48, s{sSt}, {cb*18432 + j*1024}"]) for cb in range(4)]
        return it, sto
    for j in range(8):
        it, sto = post(j); u = 54 + 3*(j + 1)
        g, left = Z.fill(it, st[(u, 0)] + 3, st[(u + 2, 0)]); assert not left
        g, left = Z.fill(sto, g + 1, st[(u + 2, 1)], step=3); assert not left
    P.gaps(Z.G)
    it, sto = post(8); emit_left(P, it + sto)
    P.stampout(3, WS, sW)
    P("K3_end:\ns_endpgm")
    return P
```

```python
import sys
from fw import *
import small, xch, k1
NAME = 'adaLN_cond__gqa_block_cached__glu_gated_geglu__prompt'
def build():
    ks = [('k0_kernel', small.k0(), 576, 4096, 72, 72), (NAME + '_kernel', k1.k1(), 256, xch.LDS, 512, 256)]
    if os.environ.get('EMPTY'):
        e = Prog('e'); e('s_endpgm'); ks.insert(int(os.environ['EMPTY']), ('e_kernel', e, 64, 0, 8, 8))
    ref = open('hdr.txt').read().split('\n')
    out = [l for l in ref[:15]]
    for n, p, blk, lds, vg, ac in ks: out.append(f"; @launch kernel={n} grid=(256,1,1) block=({blk},1,1) lds={lds}")
    out.append('.amdgcn_target "amdgcn-amd-amdhsa--gfx950"')
    txt = '\n'.join(out) + '\n'
    for n, p, blk, lds, vg, ac in ks:
        txt += header(n) + p.finish(); print(n, p.stats, file=sys.stderr)
    if PROF: txt += '; NAMES ' + ' '.join(x or '-' for x in ks[1][1].stats['names'][2:-1]) + '\n'
    txt += '.section .rodata,"a"\n'
    for n, p, blk, lds, vg, ac in ks: txt += desc(n, vg, ac)
    return txt
if __name__ == '__main__':
    t = build(); path = sys.argv[1] if len(sys.argv) > 1 else 'cdna_kernels/' + NAME + '.s'
    open(path, 'w').write(t); print(len(t))
```

```python
import re, os
PROF = int(os.environ.get('PROF', '0'))
TRANS = ('v_exp_f32','v_log_f32','v_rcp_f32','v_rsq_f32','v_sqrt_f32','v_sin_f32','v_cos_f32')
def regs(tok):
    tok = tok.strip().lstrip('-').strip('|')
    m = re.fullmatch(r'([vas])\[(\d+):(\d+)\]', tok)
    if m: return [f"{m.group(1)}{i}" for i in range(int(m.group(2)), int(m.group(3))+1)]
    if re.fullmatch(r'[vas]\d+', tok): return [tok]
    if tok == 'vcc': return ['vcc']
    if tok == 'exec': return ['exec']
    if tok == 'm0': return ['m0']
    return []
class I:
    __slots__ = ('t','op','k','r','w','tag','srcC','ab','wide','dpp')
    def __init__(s, t, tag=None):
        s.t = t; s.tag = tag; s.srcC = []; s.ab = []; s.wide = False
        t0 = t.split(';')[0].strip()
        s.dpp = ('row_' in t0) or ('quad_perm' in t0)
        if t0.endswith(':') or t0.startswith('.'):
            s.op = t0; s.k = 'label' if t0.endswith(':') else 'dir'; s.r = []; s.w = []; return
        t0 = re.sub(r'\w+:\[[^\]]*\]', '', t0).strip()
        p = t0.split(None, 1); op = p[0]; s.op = op
        ops = [x.strip() for x in p[1].split(',')] if len(p) > 1 else []
        if ops:
            last = ops[-1].split()
            mods = last[1:]; ops[-1] = last[0] if last else ''
        else: mods = []
        R = lambda lst: [x for o in lst for x in regs(o)]
        if op.startswith('v_mfma'):
            s.k = 'mfma'; s.w = R(ops[:1]); s.ab = R(ops[1:3]); s.srcC = R(ops[3:4]); s.r = s.ab + s.srcC
        elif op.startswith('v_smfmac'):
            s.k = 'mfma'; s.w = R(ops[:1]); s.ab = R(ops[1:4]); s.srcC = R(ops[:1]); s.r = s.ab + s.srcC
        elif op.startswith('ds_read') or op.startswith('ds_bpermute') or op.startswith('ds_swizzle'):
            s.k = 'ds'; s.w = R(ops[:1]); s.r = R(ops[1:])
        elif op.startswith('ds_'):
            s.k = 'ds'; s.w = []; s.r = R(ops)
        elif op.startswith('buffer_load') or op.startswith('global_load'):
            s.k = 'vm'
            if 'lds' in mods: s.w = []; s.r = R(ops) + ['m0']
            elif tag == 'pf': s.w = []; s.r = R(ops[1:])
            else: s.w = R(ops[:1]); s.r = R(ops[1:])
        elif op.startswith('buffer_store') or op.startswith('global_store') or op.startswith('buffer_atomic'):
            s.k = 'vm'; s.w = []; s.r = R(ops); s.wide = op.endswith('x4') or op.endswith('x3')
            if s.wide: s.ab = R(ops[:1])
        elif op.startswith('buffer_'):
            s.k = 'vm'; s.w = []; s.r = []
        elif op.startswith('s_load') or op.startswith('s_memtime') or op.startswith('s_memrealtime'):
            s.k = 'smem'; s.w = R(ops[:1]); s.r = R(ops[1:])
        elif op == 's_waitcnt': s.k = 'wait'; s.w = []; s.r = []
        elif op == 'WAITVM': s.k = 'waitvm'; s.w = []; s.r = []
        elif op == 's_barrier': s.k = 'bar'; s.w = []; s.r = []
        elif op == 's_nop': s.k = 'nop'; s.w = []; s.r = []
        elif op.startswith('s_cbranch') or op in ('s_branch', 's_endpgm'):
            s.k = 'br'; s.w = []; s.r = []
        elif op.startswith('s_cmp') or op in ('s_setprio', 's_sleep'):
            s.k = 'salu'; s.w = []; s.r = R(ops)
        elif op.startswith('s_'):
            s.k = 'salu'; s.w = R(ops[:1]); s.r = R(ops[1:])
            if 'saveexec' in op: s.w = s.w + ['exec']
        elif op.startswith('v_'):
            s.k = 'valu'
            if 'permlane' in op and 'swap' in op: s.w = R(ops[:2]); s.r = R(ops[:2])
            else:
                s.w = R(ops[:1]); s.r = R(ops[1:])
                if op.startswith('v_fmac') or op.startswith('v_mac') or op.startswith('v_dot2c') or s.dpp: s.r = s.r + s.w
                if op.startswith('v_cndmask') and len(ops) == 3: s.r = s.r + ['vcc']
                if '_co_' in op: s.w = R(ops[:2]); s.r = R(ops[2:])
        else: raise Exception('unknown op ' + t)
    def ws(s):
        if s.k == 'nop': return int(s.t.split()[1], 0) + 1
        if s.k in ('label', 'dir', 'waitvm'): return 0
        return 1

def need(p, c):
    n = 0
    pw = set(p.w)
    if p.k == 'valu':
        vw = {x for x in pw if x[0] in 'va' and x != 'vcc'}
        sw = pw - vw
        if c.k == 'mfma' and vw & set(c.r): n = max(n, 2)
        if c.k == 'valu':
            if p.op in TRANS and vw & set(c.r): n = max(n, 1)
            if ('permlane' in c.op or c.dpp) and vw & set(c.r): n = max(n, 2)
            if c.op.startswith('v_read') and vw & set(c.r): n = max(n, 1)
            if sw & set(c.r): n = max(n, 2)
            if 'mix' in p.op and p.op != 'v_fma_mix_f32' and vw & set(c.r + c.w): n = max(n, 1)
        if c.k == 'vm' and sw & set(c.r): n = max(n, 5)
        if p.op.startswith('v_dot') and c.op != p.op and vw & set(c.r + c.w): n = max(n, 3)
    if p.k == 'mfma':
        big = 12 if p.op.startswith('v_smfmac') else 8
        if c.k == 'mfma':
            if pw & set(c.ab): n = max(n, big)
            if pw & set(c.srcC) and (c.srcC != p.w or p.op != c.op): n = max(n, big - 2)
            if pw & set(c.w) and not (pw & set(c.srcC)): n = max(n, 0)
        elif c.k in ('valu', 'ds', 'vm'):
            if pw & set(c.r + c.w): n = max(n, big)
            if c.k == 'valu' and set(p.srcC) & set(c.w): n = max(n, 3 if big == 8 else 7)
    if p.k == 'salu' and 'm0' in pw and c.k == 'vm' and 'm0' in c.r: n = max(n, 1)
    if p.k == 'vm' and p.wide and set(p.ab) & set(c.w): n = max(n, 2 if c.k in ('valu', 'mfma') else 1)
    return n

class Prog:
    def __init__(s, name):
        s.name = name; s.ins = []; s.stats = {}
    def __call__(s, text, tag=None):
        for l in text.split('\n'):
            l = l.strip()
            if l and not l.startswith(';'): s.ins.append(I(l, tag))
    def stamptext(s, real=False, name=None):
        if not PROF: return []
        if name and name[0] not in os.environ.get('STG', 'sx'): return []
        s.stats.setdefault('names', []).append(name or '')
        n = s.stats.get('stamps', 0); s.stats['stamps'] = n + 1
        assert n < 20
        r = [f"s_mov_b32 s{80+n-1}, s100"] if n else []
        return r + [f"{'s_memrealtime' if real or PROF == 2 else 's_memtime'} s[100:101]"]
    def stamp(s, real=False, wait=False, name=None):
        if isinstance(real, str): name = real; real = False
        t = s.stamptext(real, name)
        if t and (wait or (name and name[-1] == '!')): s("s_waitcnt lgkmcnt(0)")
        for x in t: s(x)
    def stampout(s, kidx, ws, wave):
        if not PROF: return
        s.stamp(False, True); s('s_waitcnt vmcnt(0)'); s.stamp(True, True)
        n = s.stats['stamps']
        s(f"s_waitcnt lgkmcnt(0)\ns_mov_b32 s{80+n-1}, s100\ns_lshl_b32 s62, s2, 4\ns_add_u32 s62, s62, s{wave}\ns_lshl_b32 s62, s62, 7\ns_add_u32 s62, s62, {0x8000000 + kidx*0x100000}\nv_mov_b32 v0, 0")
        if os.environ.get('DBG') and kidx == 1:
            s("s_load_dwordx2 s[64:65], s[0:1], 96\ns_waitcnt lgkmcnt(0)"); srd(s, 68, 64, 256)
            s(f"s_lshl_b32 s63, s2, 2\ns_add_u32 s63, s63, s{wave}\ns_cmp_eq_u32 s63, {os.environ['DBG']}\ns_cselect_b32 s63, 0, 0x1000")
            for i in range(min(16, n - 2)): s(f"s_sub_u32 s64, s{82+i}, s80\nv_mov_b32 v1, s64\nbuffer_store_dword v1, v0, s[68:71], s63 offen offset:{4*i}\ns_nop 0")
        for i in range(n): s(f"v_mov_b32 v1, s{80+i}\nbuffer_store_dword v1, v0, s[{ws}:{ws+3}], s62 offen offset:{4*i}\ns_nop 0")
    def gaps(s, G):
        for g in G:
            if g.get('m'): s(g['m'])
            for key in ('s', 'd', 'v'):
                for x in g.get(key, []):
                    if isinstance(x, tuple): s(x[0], x[1])
                    else: s(x)
    def autowait(s):
        out = []; cnt = {'ds': [], 'vm': []}
        lastm = -1
        def setwait(pos, kind, n):
            name = 'lgkmcnt' if kind == 'ds' else 'vmcnt'
            if pos < len(out) and out[pos].k == 'wait' and out[pos].tag == 'auto':
                d = dict(re.findall(r'(\w+)\((\d+)\)', out[pos].t))
                d[name] = min(int(d.get(name, 99)), n)
                out[pos] = I('s_waitcnt ' + ' '.join(f"{k}({v})" for k, v in sorted(d.items(), reverse=True)), 'auto')
            else:
                out.insert(pos, I(f"s_waitcnt {name}({n})", 'auto'))
                for kk in cnt:
                    for e in cnt[kk]:
                        if e[0] >= pos: e[0] += 1
        for c in s.ins:
            if c.k in ('label', 'br'):
                for kk in (cnt if c.tag != 'keep' else ()):
                    bad = [e[1].t for e in cnt[kk] if e[1].w]
                    assert not bad, f"{s.name}: pending reg loads at {c.t}: {bad[:3]}"
                lastm = -1
                if c.k == 'label' and c.tag == 'reset': cnt = {'ds': [], 'vm': []}
            if c.k == 'waitvm':
                tg = c.t.split()[1]
                idx = [i for i, e in enumerate(cnt['vm']) if e[1].tag == tg]
                if idx:
                    n = min(63, len(cnt['vm']) - 1 - idx[-1])
                    out.append(I(f"s_waitcnt vmcnt({n})"))
                    cnt['vm'] = cnt['vm'][len(cnt['vm']) - n:] if n else []
                continue
            if c.k == 'wait':
                d = dict(re.findall(r'(\w+)\((\d+)\)', c.t))
                for kk, nm in (('ds', 'lgkmcnt'), ('vm', 'vmcnt')):
                    if nm in d:
                        n = int(d[nm]); cnt[kk] = cnt[kk][len(cnt[kk]) - n:] if n and len(cnt[kk]) > n else (cnt[kk] if n else [])
            for kk, mx in (('ds', 15), ('vm', 63)):
                touch = set(c.r) | (set(c.w) if c.k != kk else set())
                idx = [i for i, e in enumerate(cnt[kk]) if touch & set(e[1].w)]
                if idx:
                    pi = idx[-1]; ppos = cnt[kk][pi][0]
                    pos = lastm + 1 if (lastm >= 0 and ppos <= lastm) else len(out)
                    if pos == len(out) and lastm >= 0 and pos != lastm + 1: s.stats['latewait'] = s.stats.get('latewait', 0) + 1
                    before = [i for i, e in enumerate(cnt[kk]) if e[0] < pos]
                    n = min(mx, before[-1] - pi)
                    setwait(pos, kk, n)
                    cnt[kk] = cnt[kk][before[-1] + 1 - n:]
            out.append(c)
            if c.k in ('ds', 'vm'): cnt[c.k].append([len(out) - 1, c])
            if c.k == 'smem': pass
            if c.k == 'mfma': lastm = len(out) - 1
        s.ins = out
    def pad(s, seq=None, fix=True):
        out = []; nn = 0
        for c in (seq if seq is not None else s.ins):
            if c.ws() and c.k not in ('nop', 'wait', 'bar', 'br'):
                d = 0; req = 0
                for p in reversed(out):
                    n = need(p, c)
                    if n - d > req: req = n - d
                    d += p.ws()
                    if d >= 12: break
                if req > 0:
                    assert fix, f"{s.name}: hazard across back-edge before {c.t}"
                    out.append(I(f"s_nop {req-1}")); nn += 1
            out.append(c)
        if fix: s.ins = out; s.stats['nops'] = nn
    def checkedges(s):
        lab = {c.op[:-1]: i for i, c in enumerate(s.ins) if c.k == 'label'}
        for i, c in enumerate(s.ins):
            if c.k == 'br' and c.op != 's_endpgm':
                j = lab[c.t.split()[1]]
                s.pad(s.ins[max(0, i-14):i+1] + s.ins[j:j+14], fix=False)
    def finish(s):
        s.autowait(); s.pad(); s.checkedges()
        s.stats['n'] = len(s.ins)
        return '\n'.join(c.t for c in s.ins) + '\n'

def codepf(P, n, va, vd, sa):
    P(f"s_getpc_b64 s[{sa}:{sa+1}]\nv_lshlrev_b32 v{va}, 7, v0\nv_mov_b32 v{va+1}, s{sa+1}\nv_add_co_u32 v{va}, vcc, s{sa}, v{va}\nv_addc_co_u32 v{va+1}, vcc, 0, v{va+1}, vcc")
    for i in range(n):
        P(f"global_load_dword v{vd}, v[{va}:{va+1}], off")
        if i + 1 < n: P(f"v_add_co_u32 v{va}, vcc, 0x8000, v{va}\nv_addc_co_u32 v{va+1}, vcc, 0, v{va+1}, vcc")
def header(name):
    return f".text\n.globl {name}\n.p2align 8\n.type {name},@function\n{name}:\n"
def desc(name, vgpr, accum, sgpr=102):
    return f""".p2align 6
.amdhsa_kernel {name}
  .amdhsa_next_free_vgpr {vgpr}
  .amdhsa_next_free_sgpr {sgpr}
  .amdhsa_accum_offset {accum}
  .amdhsa_group_segment_fixed_size 0
  .amdhsa_kernarg_size 112
  .amdhsa_user_sgpr_count 2
  .amdhsa_user_sgpr_kernarg_segment_ptr 1
  .amdhsa_system_sgpr_workgroup_id_x 1
  .amdhsa_float_denorm_mode_32 3
.end_amdhsa_kernel
"""
def R(p, b, n=4): return f"{p}[{b}:{b+n-1}]" if n > 1 else f"{p}{b}"
def srd(P, d, base, size, off=None):
    if off is None:
        P(f"s_mov_b32 s{d}, s{base}\ns_mov_b32 s{d+1}, s{base+1}")
    else:
        P(f"s_add_u32 s{d}, s{base}, {off}\ns_addc_u32 s{d+1}, s{base+1}, 0")
    P(f"s_mov_b32 s{d+2}, {size}\ns_mov_b32 s{d+3}, 0x20000")

def mf(d, a, b, c=None):
    return f"v_mfma_f32_16x16x32_bf16 {d}, {a}, {b}, {d if c is None else c}"
class Sched:
    def __init__(s): s.G = []
    def m(s, text):
        s.G.append(dict(m=text, s=[], d=[], v=[], free=2)); return len(s.G) - 1
    def put(s, g, key, x, cost=1):
        s.G[g][key].append(x); s.G[g]['free'] -= cost
    def sc(s, g, x): s.G[g]['s'].append(x)
    def fill(s, items, start, end=None, step=1):
        g = start; end = len(s.G) if end is None else end
        for n, it in enumerate(items):
            key, x, cost, sca = it[:4]
            if len(it) > 4: g = max(g, it[4])
            while g < end and (s.G[g]['free'] < cost or (sca and len(s.G[g]['s']) + len(sca) > 2)): g += 1
            if g >= end: return g, items[n:]
            s.put(g, key, x, cost)
            for y in sca: s.sc(g, y)
            if cost == 2: g += step
        return g, []
def V(x, e=None): return ('v', x, 2 if x.split()[0] in TRANS else 1, []) + ((e,) if e is not None else ())
def emit_left(P, left):
    for it in left:
        for y in it[3]: P(y)
        x = it[1]
        if isinstance(x, tuple): P(x[0], x[1])
        else: P(x)
```

```python
import re, os
PROF = int(os.environ.get('PROF', '0'))
TRANS = ('v_exp_f32','v_log_f32','v_rcp_f32','v_rsq_f32','v_sqrt_f32','v_sin_f32','v_cos_f32')
def regs(tok):
    tok = tok.strip().lstrip('-').strip('|')
    m = re.fullmatch(r'([vas])\[(\d+):(\d+)\]', tok)
    if m: return [f"{m.group(1)}{i}" for i in range(int(m.group(2)), int(m.group(3))+1)]
    if re.fullmatch(r'[vas]\d+', tok): return [tok]
    if tok == 'vcc': return ['vcc']
    if tok == 'exec': return ['exec']
    if tok == 'm0': return ['m0']
    return []
class I:
    __slots__ = ('t','op','k','r','w','tag','srcC','ab','wide','dpp')
    def __init__(s, t, tag=None):
        s.t = t; s.tag = tag; s.srcC = []; s.ab = []; s.wide = False
        t0 = t.split(';')[0].strip()
        s.dpp = ('row_' in t0) or ('quad_perm' in t0)
        if t0.endswith(':') or t0.startswith('.'):
            s.op = t0; s.k = 'label' if t0.endswith(':') else 'dir'; s.r = []; s.w = []; return
        t0 = re.sub(r'\w+:\[[^\]]*\]', '', t0).strip()
        p = t0.split(None, 1); op = p[0]; s.op = op
        ops = [x.strip() for x in p[1].split(',')] if len(p) > 1 else []
        if ops:
            last = ops[-1].split()
            mods = last[1:]; ops[-1] = last[0] if last else ''
        else: mods = []
        R = lambda lst: [x for o in lst for x in regs(o)]
        if op.startswith('v_mfma'):
            s.k = 'mfma'; s.w = R(ops[:1]); s.ab = R(ops[1:3]); s.srcC = R(ops[3:4]); s.r = s.ab + s.srcC
        elif op.startswith('v_smfmac'):
            s.k = 'mfma'; s.w = R(ops[:1]); s.ab = R(ops[1:4]); s.srcC = R(ops[:1]); s.r = s.ab + s.srcC
        elif op.startswith('ds_read') or op.startswith('ds_bpermute') or op.startswith('ds_swizzle'):
            s.k = 'ds'; s.w = R(ops[:1]); s.r = R(ops[1:])
        elif op.startswith('ds_'):
            s.k = 'ds'; s.w = []; s.r = R(ops)
        elif op.startswith('buffer_load') or op.startswith('global_load'):
            s.k = 'vm'
            if 'lds' in mods: s.w = []; s.r = R(ops) + ['m0']
            elif tag == 'pf': s.w = []; s.r = R(ops[1:])
            else: s.w = R(ops[:1]); s.r = R(ops[1:])
        elif op.startswith('buffer_store') or op.startswith('global_store') or op.startswith('buffer_atomic'):
            s.k = 'vm'; s.w = []; s.r = R(ops); s.wide = op.endswith('x4') or op.endswith('x3')
            if s.wide: s.ab = R(ops[:1])
        elif op.startswith('buffer_'):
            s.k = 'vm'; s.w = []; s.r = []
        elif op.startswith('s_load') or op.startswith('s_memtime') or op.startswith('s_memrealtime'):
            s.k = 'smem'; s.w = R(ops[:1]); s.r = R(ops[1:])
        elif op == 's_waitcnt': s.k = 'wait'; s.w = []; s.r = []
        elif op == 'WAITVM': s.k = 'waitvm'; s.w = []; s.r = []
        elif op == 's_barrier': s.k = 'bar'; s.w = []; s.r = []
        elif op == 's_nop': s.k = 'nop'; s.w = []; s.r = []
        elif op.startswith('s_cbranch') or op in ('s_branch', 's_endpgm'):
            s.k = 'br'; s.w = []; s.r = []
        elif op.startswith('s_cmp') or op in ('s_setprio', 's_sleep'):
            s.k = 'salu'; s.w = []; s.r = R(ops)
        elif op.startswith('s_'):
            s.k = 'salu'; s.w = R(ops[:1]); s.r = R(ops[1:])
            if 'saveexec' in op: s.w = s.w + ['exec']
        elif op.startswith('v_'):
            s.k = 'valu'
            if 'permlane' in op and 'swap' in op: s.w = R(ops[:2]); s.r = R(ops[:2])
            else:
                s.w = R(ops[:1]); s.r = R(ops[1:])
                if op.startswith('v_fmac') or op.startswith('v_mac') or op.startswith('v_dot2c') or s.dpp: s.r = s.r + s.w
                if op.startswith('v_cndmask') and len(ops) == 3: s.r = s.r + ['vcc']
                if '_co_' in op: s.w = R(ops[:2]); s.r = R(ops[2:])
        else: raise Exception('unknown op ' + t)
    def ws(s):
        if s.k == 'nop': return int(s.t.split()[1], 0) + 1
        if s.k in ('label', 'dir', 'waitvm'): return 0
        return 1

def need(p, c):
    n = 0
    pw = set(p.w)
    if p.k == 'valu':
        vw = {x for x in pw if x[0] in 'va' and x != 'vcc'}
        sw = pw - vw
        if c.k == 'mfma' and vw & set(c.r): n = max(n, 2)
        if c.k == 'valu':
            if p.op in TRANS and vw & set(c.r): n = max(n, 1)
            if ('permlane' in c.op or c.dpp) and vw & set(c.r): n = max(n, 2)
            if c.op.startswith('v_read') and vw & set(c.r): n = max(n, 1)
            if sw & set(c.r): n = max(n, 2)
            if 'mix' in p.op and p.op != 'v_fma_mix_f32' and vw & set(c.r + c.w): n = max(n, 1)
        if c.k == 'vm' and sw & set(c.r): n = max(n, 5)
        if p.op.startswith('v_dot') and c.op != p.op and vw & set(c.r + c.w): n = max(n, 3)
    if p.k == 'mfma':
        big = 12 if p.op.startswith('v_smfmac') else 8
        if c.k == 'mfma':
            if pw & set(c.ab): n = max(n, big)
            if pw & set(c.srcC) and (c.srcC != p.w or p.op != c.op): n = max(n, big - 2)
            if pw & set(c.w) and not (pw & set(c.srcC)): n = max(n, 0)
        elif c.k in ('valu', 'ds', 'vm'):
            if pw & set(c.r + c.w): n = max(n, big)
            if c.k == 'valu' and set(p.srcC) & set(c.w): n = max(n, 3 if big == 8 else 7)
    if p.k == 'salu' and 'm0' in pw and c.k == 'vm' and 'm0' in c.r: n = max(n, 1)
    if p.k == 'vm' and p.wide and set(p.ab) & set(c.w): n = max(n, 2 if c.k in ('valu', 'mfma') else 1)
    return n

class Prog:
    def __init__(s, name):
        s.name = name; s.ins = []; s.stats = {}
    def __call__(s, text, tag=None):
        for l in text.split('\n'):
            l = l.strip()
            if l and not l.startswith(';'): s.ins.append(I(l, tag))
    def stamptext(s, real=False, name=None):
        if not PROF: return []
        if name and name[0] not in os.environ.get('STG', 'sx'): return []
        s.stats.setdefault('names', []).append(name or '')
        n = s.stats.get('stamps', 0); s.stats['stamps'] = n + 1
        assert n < 20
        r = [f"s_mov_b32 s{80+n-1}, s100"] if n else []
        return r + [f"{'s_memrealtime' if real or PROF == 2 else 's_memtime'} s[100:101]"]
    def stamp(s, real=False, wait=False, name=None):
        if isinstance(real, str): name = real; real = False
        t = s.stamptext(real, name)
        if t and (wait or (name and name[-1] == '!')): s("s_waitcnt lgkmcnt(0)")
        for x in t: s(x)
    def stampout(s, kidx, ws, wave):
        if not PROF: return
        s.stamp(False, True); s('s_waitcnt vmcnt(0)'); s.stamp(True, True)
        n = s.stats['stamps']
        s(f"s_waitcnt lgkmcnt(0)\ns_mov_b32 s{80+n-1}, s100\ns_lshl_b32 s62, s2, 4\ns_add_u32 s62, s62, s{wave}\ns_lshl_b32 s62, s62, 7\ns_add_u32 s62, s62, {0x8000000 + kidx*0x100000}\nv_mov_b32 v0, 0")
        if os.environ.get('SPIN') and kidx == 1:
            i, j = os.environ['SPIN'].split(',')
            if i == 'k': s(f"s_add_u32 s64, s52, {0x8000000 - 0x20000}\ns_addc_u32 s65, s53, 0\ns_load_dword s79, s[64:65], 0 glc\ns_waitcnt lgkmcnt(0)"); i = -1
            s(f"s_sub_u32 s66, s{80+int(j)}, s{80+int(i)}\ns_min_u32 s66, s66, 20000\ns_lshl_b32 s66, s66, 2\ns_cmp_eq_u32 s2, 0\ns_cselect_b32 s66, s66, 0")
            s(f"SPINL:\ns_memrealtime s[64:65]\ns_waitcnt lgkmcnt(0)\ns_sub_u32 s64, s64, s{80+n-1}\ns_cmp_lt_u32 s64, s66\ns_cbranch_scc1 SPINL")
        if os.environ.get('DBG') and kidx == 1:
            s("s_load_dwordx2 s[64:65], s[0:1], 96\ns_waitcnt lgkmcnt(0)"); srd(s, 68, 64, 256)
            s(f"s_lshl_b32 s63, s2, 2\ns_add_u32 s63, s63, s{wave}\ns_cmp_eq_u32 s63, {os.environ['DBG']}\ns_cselect_b32 s63, 0, 0x1000")
            for i in range(min(16, n - 2)): s(f"s_sub_u32 s64, s{82+i}, s80\nv_mov_b32 v1, s64\nbuffer_store_dword v1, v0, s[68:71], s63 offen offset:{4*i}\ns_nop 0")
        for i in range(n): s(f"v_mov_b32 v1, s{80+i}\nbuffer_store_dword v1, v0, s[{ws}:{ws+3}], s62 offen offset:{4*i}\ns_nop 0")
    def gaps(s, G):
        for g in G:
            if g.get('m'): s(g['m'])
            for key in ('s', 'd', 'v'):
                for x in g.get(key, []):
                    if isinstance(x, tuple): s(x[0], x[1])
                    else: s(x)
    def autowait(s):
        out = []; cnt = {'ds': [], 'vm': []}
        lastm = -1
        def setwait(pos, kind, n):
            name = 'lgkmcnt' if kind == 'ds' else 'vmcnt'
            if pos < len(out) and out[pos].k == 'wait' and out[pos].tag == 'auto':
                d = dict(re.findall(r'(\w+)\((\d+)\)', out[pos].t))
                d[name] = min(int(d.get(name, 99)), n)
                out[pos] = I('s_waitcnt ' + ' '.join(f"{k}({v})" for k, v in sorted(d.items(), reverse=True)), 'auto')
            else:
                out.insert(pos, I(f"s_waitcnt {name}({n})", 'auto'))
                for kk in cnt:
                    for e in cnt[kk]:
                        if e[0] >= pos: e[0] += 1
        for c in s.ins:
            if c.k in ('label', 'br'):
                for kk in (cnt if c.tag != 'keep' else ()):
                    bad = [e[1].t for e in cnt[kk] if e[1].w]
                    assert not bad, f"{s.name}: pending reg loads at {c.t}: {bad[:3]}"
                lastm = -1
                if c.k == 'label' and c.tag == 'reset': cnt = {'ds': [], 'vm': []}
            if c.k == 'waitvm':
                tg = c.t.split()[1]
                idx = [i for i, e in enumerate(cnt['vm']) if e[1].tag == tg]
                if idx:
                    n = min(63, len(cnt['vm']) - 1 - idx[-1])
                    out.append(I(f"s_waitcnt vmcnt({n})"))
                    cnt['vm'] = cnt['vm'][len(cnt['vm']) - n:] if n else []
                continue
            if c.k == 'wait':
                d = dict(re.findall(r'(\w+)\((\d+)\)', c.t))
                for kk, nm in (('ds', 'lgkmcnt'), ('vm', 'vmcnt')):
                    if nm in d:
                        n = int(d[nm]); cnt[kk] = cnt[kk][len(cnt[kk]) - n:] if n and len(cnt[kk]) > n else (cnt[kk] if n else [])
            for kk, mx in (('ds', 15), ('vm', 63)):
                touch = set(c.r) | (set(c.w) if c.k != kk else set())
                idx = [i for i, e in enumerate(cnt[kk]) if touch & set(e[1].w)]
                if idx:
                    pi = idx[-1]; ppos = cnt[kk][pi][0]
                    pos = lastm + 1 if (lastm >= 0 and ppos <= lastm) else len(out)
                    if pos == len(out) and lastm >= 0 and pos != lastm + 1: s.stats['latewait'] = s.stats.get('latewait', 0) + 1
                    before = [i for i, e in enumerate(cnt[kk]) if e[0] < pos]
                    n = min(mx, before[-1] - pi)
                    setwait(pos, kk, n)
                    cnt[kk] = cnt[kk][before[-1] + 1 - n:]
            out.append(c)
            if c.k in ('ds', 'vm'): cnt[c.k].append([len(out) - 1, c])
            if c.k == 'smem': pass
            if c.k == 'mfma': lastm = len(out) - 1
        s.ins = out
    def pad(s, seq=None, fix=True):
        out = []; nn = 0
        for c in (seq if seq is not None else s.ins):
            if c.ws() and c.k not in ('nop', 'wait', 'bar', 'br'):
                d = 0; req = 0
                for p in reversed(out):
                    n = need(p, c)
                    if n - d > req: req = n - d
                    d += p.ws()
                    if d >= 12: break
                if req > 0:
                    assert fix, f"{s.name}: hazard across back-edge before {c.t}"
                    out.append(I(f"s_nop {req-1}")); nn += 1
            out.append(c)
        if fix: s.ins = out; s.stats['nops'] = nn
    def checkedges(s):
        lab = {c.op[:-1]: i for i, c in enumerate(s.ins) if c.k == 'label'}
        for i, c in enumerate(s.ins):
            if c.k == 'br' and c.op != 's_endpgm':
                j = lab[c.t.split()[1]]
                s.pad(s.ins[max(0, i-14):i+1] + s.ins[j:j+14], fix=False)
    def finish(s):
        s.autowait(); s.pad(); s.checkedges()
        s.stats['n'] = len(s.ins)
        return '\n'.join(c.t for c in s.ins) + '\n'

def codepf(P, n, va, vd, sa):
    P(f"s_getpc_b64 s[{sa}:{sa+1}]\nv_lshlrev_b32 v{va}, 7, v0\nv_mov_b32 v{va+1}, s{sa+1}\nv_add_co_u32 v{va}, vcc, s{sa}, v{va}\nv_addc_co_u32 v{va+1}, vcc, 0, v{va+1}, vcc")
    for i in range(n):
        P(f"global_load_dword v{vd}, v[{va}:{va+1}], off")
        if i + 1 < n: P(f"v_add_co_u32 v{va}, vcc, 0x8000, v{va}\nv_addc_co_u32 v{va+1}, vcc, 0, v{va+1}, vcc")
def header(name):
    return f".text\n.globl {name}\n.p2align 8\n.type {name},@function\n{name}:\n"
def desc(name, vgpr, accum, sgpr=102):
    return f""".p2align 6
.amdhsa_kernel {name}
  .amdhsa_next_free_vgpr {vgpr}
  .amdhsa_next_free_sgpr {sgpr}
  .amdhsa_accum_offset {accum}
  .amdhsa_group_segment_fixed_size 0
  .amdhsa_kernarg_size 112
  .amdhsa_user_sgpr_count 2
  .amdhsa_user_sgpr_kernarg_segment_ptr 1
  .amdhsa_system_sgpr_workgroup_id_x 1
  .amdhsa_float_denorm_mode_32 3
.end_amdhsa_kernel
"""
def R(p, b, n=4): return f"{p}[{b}:{b+n-1}]" if n > 1 else f"{p}{b}"
def srd(P, d, base, size, off=None):
    if off is None:
        P(f"s_mov_b32 s{d}, s{base}\ns_mov_b32 s{d+1}, s{base+1}")
    else:
        P(f"s_add_u32 s{d}, s{base}, {off}\ns_addc_u32 s{d+1}, s{base+1}, 0")
    P(f"s_mov_b32 s{d+2}, {size}\ns_mov_b32 s{d+3}, 0x20000")

def mf(d, a, b, c=None):
    return f"v_mfma_f32_16x16x32_bf16 {d}, {a}, {b}, {d if c is None else c}"
class Sched:
    def __init__(s): s.G = []
    def m(s, text):
        s.G.append(dict(m=text, s=[], d=[], v=[], free=2)); return len(s.G) - 1
    def put(s, g, key, x, cost=1):
        s.G[g][key].append(x); s.G[g]['free'] -= cost
    def sc(s, g, x): s.G[g]['s'].append(x)
    def fill(s, items, start, end=None, step=1):
        g = start; end = len(s.G) if end is None else end
        for n, it in enumerate(items):
            key, x, cost, sca = it[:4]
            if len(it) > 4: g = max(g, it[4])
            while g < end and (s.G[g]['free'] < cost or (sca and len(s.G[g]['s']) + len(sca) > 2)): g += 1
            if g >= end: return g, items[n:]
            s.put(g, key, x, cost)
            for y in sca: s.sc(g, y)
            if cost == 2: g += step
        return g, []
def V(x, e=None): return ('v', x, 2 if x.split()[0] in TRANS else 1, []) + ((e,) if e is not None else ())
def emit_left(P, left):
    for it in left:
        for y in it[3]: P(y)
        x = it[1]
        if isinstance(x, tuple): P(x[0], x[1])
        else: P(x)
```
